```python
import torch

def _softmax(x, axis=-1):
    return torch.softmax(x, dim=axis)

def _gelu(x):
    return torch.nn.functional.gelu(x, approximate='tanh')

def _silu(x):
    return torch.nn.functional.silu(x)

def _sigmoid(x):
    return torch.sigmoid(x)

def _layernorm(x, axis=-1, eps=1e-05):
    m = x.mean(dim=axis, keepdim=True)
    v = x.var(dim=axis, keepdim=True, unbiased=False)
    return (x - m) / torch.sqrt(v + eps)

def _scatter_add(tgt, idx, src, axis=0):
    return tgt.clone().index_add_(axis, idx, src)

def _segment_sum(src, seg, n):
    out = torch.zeros((n,) + src.shape[1:], dtype=src.dtype)
    return out.index_add_(0, seg, src)

def _pad(x, pw):
    flat = tuple((v for pair in reversed(pw) for v in pair))
    return torch.nn.functional.pad(x, flat)
kernel_name = 'standalone__conformer_conv_module__speech'

def setup_inputs():

    _w = lambda a: (lambda t: t.to(torch.bfloat16) if t.is_floating_point() else t)(torch.as_tensor(a))
    B, T, D, K = (2, 16000, 256, 31)
    return {'x': _w((lambda *s: torch.randn(*s, dtype=torch.bfloat16) * 0.2)(B, T, D)), 'w_pw1': _w((lambda *s: torch.randn(*s, dtype=torch.bfloat16) * 0.2)(D, 2 * D)), 'dw': _w((lambda *s: torch.randn(*s, dtype=torch.bfloat16) * 0.2)(K, D)), 'w_pw2': _w((lambda *s: torch.randn(*s, dtype=torch.bfloat16) * 0.05)(D, D))}

def reference(x, w_pw1, dw, w_pw2):
    B, T, D = x.shape
    K = dw.shape[0]
    h = x @ w_pw1
    a, b = (h[..., :D].clone(), h[..., D:].clone())
    h = a * _sigmoid(b)
    pad = K // 2
    hp = _pad(h, ((0, 0), (pad, pad), (0, 0)))
    out = torch.zeros_like(h)
    for i in range(K):
        out = out + hp[:, i:i + T, :] * dw[i][None, None, :]
    return _silu(out) @ w_pw2
```

```python
import re

def regs_of(tok):
    tok = tok.strip().lstrip('-')
    m = re.fullmatch(r'([vs])\[(\d+):(\d+)\]', tok)
    if m: return {(m.group(1), i) for i in range(int(m.group(2)), int(m.group(3)) + 1)}
    m = re.fullmatch(r'([vs])(\d+)', tok)
    if m: return {(m.group(1), int(m.group(2)))}
    if tok == 'vcc': return {('s', 'vcc')}
    if tok == 'm0': return {('s', 'm0')}
    if tok == 'exec': return {('s', 'exec')}
    return set()

TRANS = ('v_exp_', 'v_rcp_', 'v_log_', 'v_rsq_', 'v_sqrt_')

class Ins:
    def __init__(self, text, tag=None):
        self.text = text
        self.tag = tag
        t = text.split(';')[0].strip()
        self.is_label = t.endswith(':') or t.startswith('.') or t == ''
        self.mn = t.split()[0] if t and not self.is_label else ''
        rest = t[len(self.mn):].strip()
        ops = [o.strip() for o in rest.split(',')] if rest else []
        if ops:
            ops[-1:] = ops[-1].split()
        self.ops = ops
        mn = self.mn
        self.defs, self.uses = set(), set()
        self.kind = 'other'
        self.passes = 0
        if mn.startswith('v_mfma'):
            self.kind = 'mfma'
            self.passes = 8 if '32x32x16' in mn else (4 if '16x16x32' in mn else 2)
            self.defs = regs_of(ops[0]); self.srcA = regs_of(ops[1]); self.srcB = regs_of(ops[2]); self.srcC = regs_of(ops[3])
            self.uses = self.srcA | self.srcB | self.srcC
        elif mn.startswith('v_'):
            self.kind = 'valu'
            self.defs = regs_of(ops[0])
            for o in ops[1:]: self.uses |= regs_of(o)
            if mn.startswith(('v_fmac', 'v_permlane')): self.uses |= self.defs
            if mn.startswith('v_permlane'): self.defs |= regs_of(ops[1])
        elif mn.startswith('ds_read'):
            self.kind = 'ds'
            self.defs = regs_of(ops[0]); self.uses = regs_of(ops[1])
        elif mn.startswith('ds_'):
            self.kind = 'ds'
            for o in ops: self.uses |= regs_of(o)
        elif mn.startswith(('buffer_load', 'global_load')):
            self.kind = 'vm'
            if 'lds' in ops:
                for o in ops: self.uses |= regs_of(o)
                self.uses |= {('s', 'm0')}
            else:
                self.defs = regs_of(ops[0])
                for o in ops[1:]: self.uses |= regs_of(o)
        elif mn.startswith(('buffer_', 'global_')):
            self.kind = 'vm'
            for o in ops: self.uses |= regs_of(o)
            self.wide_store = 'x4' in mn or 'x3' in mn
            self.data = regs_of(ops[0])
        elif mn.startswith('s_'):
            self.kind = 'salu'
            if mn.startswith(('s_cmp', 's_waitcnt', 's_barrier', 's_nop', 's_branch', 's_cbranch', 's_setprio', 's_endpgm', 's_setpc', 's_sleep')):
                for o in ops: self.uses |= regs_of(o)
            else:
                if ops: self.defs = regs_of(ops[0])
                for o in ops[1:]: self.uses |= regs_of(o)
        self.trans = mn.startswith(TRANS)

class Trace:
    def __init__(self, parent=None):
        self.out = []
        if parent is None:
            self.hist = []
            self.state = 0
            self.lds = []
            self.vm = []
        else:
            self.hist = list(parent.hist); self.state = parent.state
            self.lds = list(parent.lds); self.vm = list(parent.vm)
        self.nnop = 0
    def raw(self, text):
        self.out.append(text)
    def _push(self, ins):
        self.out.append('    ' + ins.text)
        n = 1
        if ins.mn == 's_nop': n = int(ins.ops[0]) + 1
        self.hist.append((ins, self.state))
        self.state += n
        if len(self.hist) > 40: self.hist = self.hist[-40:]
    def _wait(self, lg=None, vm=None):
        parts = []
        if vm is not None:
            vm = min(vm, 62); parts.append(f'vmcnt({vm})'); self.vm = self.vm[len(self.vm) - vm:] if vm else []
        if lg is not None:
            lg = min(lg, 14); parts.append(f'lgkmcnt({lg})'); self.lds = self.lds[len(self.lds) - lg:] if lg else []
        self._push(Ins('s_waitcnt ' + ' '.join(parts)))
    def wait_op(self, *handles):
        lg = vm = None
        for h in handles:
            if h in self.lds:
                n = len(self.lds) - 1 - self.lds.index(h); lg = n if lg is None else min(lg, n)
            if h in self.vm:
                n = len(self.vm) - 1 - self.vm.index(h); vm = n if vm is None else min(vm, n)
        if lg is not None or vm is not None: self._wait(lg, vm)
    def wait_lds(self):
        if self.lds: self._wait(lg=0)
    def wait_vm(self):
        if self.vm: self._wait(vm=0)
    def __call__(self, text):
        ins = Ins(text)
        if ins.is_label:
            self.out.append(text); return ins
        touched = ins.defs | ins.uses
        need = [h for h in self.lds + self.vm if h.defs & touched]
        if ins.kind == 'ds':
            need = [h for h in need if not (h.kind == 'ds' and not (h.defs & ins.uses))]
        if need: self.wait_op(*need)
        req = 0
        for p, st in self.hist:
            have = self.state - st - (int(p.ops[0]) + 1 if p.mn == 's_nop' else 1)
            w = self.hazard(p, ins)
            if w > have: req = max(req, w - have)
        while req > 0:
            k = min(req, 16)
            self._push(Ins(f's_nop {k-1}')); self.nnop += 1
            req -= k
        self._push(ins)
        if ins.kind == 'ds': self.lds.append(ins)
        if ins.kind == 'vm': self.vm.append(ins)
        if ins.mn == 's_waitcnt':
            m = re.search(r'lgkmcnt\((\d+)\)', text)
            if m:
                n = int(m.group(1)); self.lds = self.lds[len(self.lds) - n:] if n and len(self.lds) > n else ([] if n == 0 else self.lds)
            m = re.search(r'vmcnt\((\d+)\)', text)
            if m:
                n = int(m.group(1)); self.vm = self.vm[len(self.vm) - n:] if n and len(self.vm) > n else ([] if n == 0 else self.vm)
        return ins
    @staticmethod
    def hazard(p, c):
        w = 0
        vd = {r for r in p.defs if r[0] == 'v'}
        sd = {r for r in p.defs if r[0] == 's'}
        if p.kind == 'valu':
            if c.kind == 'mfma' and vd & c.uses: w = max(w, 2)
            if p.trans and c.kind in ('valu', 'ds', 'vm') and vd & c.uses: w = max(w, 1)
            if c.mn.startswith(('v_readfirstlane', 'v_readlane')) and vd & c.uses: w = max(w, 1)
            if c.mn.startswith('v_permlane') and vd & c.uses: w = max(w, 2)
            if 'dpp' in c.text and vd & c.uses: w = max(w, 2)
            if sd & c.uses:
                if c.kind == 'vm': w = max(w, 5)
                elif c.kind in ('valu', 'mfma'): w = max(w, 2)
                elif c.kind == 'salu': w = max(w, 1)
            if ('s', 'exec') in sd and c.kind == 'mfma': w = max(w, 4)
        if p.kind == 'mfma':
            big = {2: 5, 4: 8, 8: 12}[p.passes]
            if c.kind == 'mfma':
                if vd & (c.srcA | c.srcB): w = max(w, big)
                if vd & c.srcC:
                    if vd == c.srcC and p.passes == c.passes: w = max(w, 2 if p.passes == 2 else 0)
                    else: w = max(w, {2: 4, 4: 6, 8: 10}[p.passes])
                elif vd & c.defs:
                    w = max(w, big)
            elif c.kind in ('valu', 'ds', 'vm'):
                if vd & (c.uses | c.defs): w = max(w, big)
                if c.kind == 'valu' and p.srcC & c.defs: w = max(w, {2: 1, 4: 3, 8: 7}[p.passes])
        if p.kind == 'vm' and getattr(p, 'wide_store', False) and p.data & c.defs: w = max(w, 2)
        if p.kind == 'salu' and ('s', 'm0') in sd and c.kind == 'vm' and ('s', 'm0') in c.uses: w = max(w, 1)
        return w
```

```python
import sys, struct
from asmlib import Trace
NAME = "standalone__conformer_conv_module__speech"
def f2u(x): return struct.unpack('<I', struct.pack('<f', x))[0]
LOG2E = 1.4426950408889634; LN2 = 0.6931471805599453

XB, XSZ = 0, 16896
SB = 50688
GB, GSZ = 83456, 4608
TB, TSZ = 120320, 4864
LDS = 159744
vXA, vTR, vGW, vGR, vT, vSW, vOG, vXG = range(8)
R0 = 8
def R(i, n=1): return f"v{R0+i}" if n == 1 else f"v[{R0+i}:{R0+i+n-1}]"
W1 = 64; W2 = 192
def V(i, n=1): return f"v{i}" if n == 1 else f"v[{i}:{i+n-1}]"
def W1a(s): return W1 + 8*s
def W1b(s): return W1 + 8*s + 4
def W2f(s): return W2 + 4*s
sX, sW1, sDW, sW2, sO, sWS, sDBG = "s[4:7]", "s[8:11]", "s[12:15]", "s[16:19]", "s[20:23]", "s[24:27]", "s[28:31]"
sWAVE, sXROW, sT0, sT1, sK, sK2 = "s32", "s33", "s34", "s35", "s50", "s51"
STAMP0 = 52

class Gen:
    def __init__(self, stamps=False, opts=None):
        self.stamps = stamps; self.o = opts or {}
        self.names = {}
    def stamp(self, t, name):
        if not self.stamps: return
        k = t.nstamp; t.nstamp += 1
        assert STAMP0 + 2*k + 1 <= 101
        t.stamp_names.append(name)
        t(f"s_memtime s[{STAMP0+2*k}:{STAMP0+2*k+1}]")

    def prologue(self, t):
        t.nstamp = 0; t.stamp_names = []
        self.stamp(t, "start")
        t("s_cmp_ge_u32 s2, 250")
        t("s_cbranch_scc1 L_end")
        t("s_load_dwordx8 s[36:43], s[0:1], 0")
        t("s_load_dwordx4 s[44:47], s[0:1], 32")
        t("s_load_dwordx2 s[48:49], s[0:1], 48")
        l, h, a, b, c, d = R(0), R(1), R(2), R(3), R(4), R(5)
        t(f"v_lshrrev_b32 {a}, 6, v0")
        t(f"v_and_b32 {l}, 63, v0")
        t(f"v_readfirstlane_b32 {sWAVE}, {a}")
        t(f"v_lshrrev_b32 {h}, 5, {l}")
        t(f"v_xor_b32 {a}, {l}, {h}")
        t(f"v_lshlrev_b32 v{vXG}, 4, {a}")
        t(f"v_bfe_u32 {a}, {l}, 2, 3")
        t(f"v_bcnt_u32_b32 {a}, {a}, 0")
        t(f"v_and_b32 {a}, 1, {a}")
        t(f"v_lshl_or_b32 {a}, {h}, 1, {a}")
        t(f"v_bfe_u32 {b}, {l}, 3, 2")
        t(f"v_lshl_or_b32 {a}, {b}, 2, {a}")
        t(f"v_and_b32 {c}, 3, {l}")
        t(f"s_lshl_b32 {sT0}, {sWAVE}, 6")
        t(f"v_lshlrev_b32 {d}, 4, {c}")
        t(f"v_add_u32 {R(6)}, {sT0}, {d}")
        t(f"v_lshl_add_u32 v{vOG}, {a}, 9, {R(6)}")
        t(f"v_lshrrev_b32 {b}, 2, {l}")
        t(f"v_lshl_add_u32 {R(7)}, {b}, 9, {R(6)}")
        t(f"v_lshl_add_u32 {R(54)}, {b}, 10, {R(6)}")
        t("s_cmp_ge_u32 s2, 125")
        t(f"s_cselect_b32 {sT0}, 8192000, 0")
        t(f"s_cselect_b32 {sT1}, 125, 0")
        t(f"s_sub_u32 {sT1}, s2, {sT1}")
        t(f"s_lshl_b32 {sT1}, {sT1}, 16")
        t(f"s_sub_u32 {sXROW}, {sT1}, 8192")
        t("s_mov_b32 s6, 8192000"); t("s_mov_b32 s7, 0x20000")
        t("s_mov_b32 s10, 262144"); t("s_mov_b32 s11, 0x20000")
        t("s_mov_b32 s14, 15872"); t("s_mov_b32 s15, 0x20000")
        t("s_mov_b32 s18, 131072"); t("s_mov_b32 s19, 0x20000")
        t("s_mov_b32 s22, 65536"); t("s_mov_b32 s23, 0x20000")
        t("s_waitcnt lgkmcnt(0)")
        t(f"s_add_u32 s4, s36, {sT0}"); t("s_addc_u32 s5, s37, 0")
        t("s_mov_b32 s12, s40"); t("s_mov_b32 s13, s41")
        t("s_mov_b32 s8, s38"); t("s_mov_b32 s9, s39")
        t(f"v_add_u32 {R(8)}, 8192, {R(7)}")
        self.dwld = [t(f"buffer_load_dwordx4 {R(32,4)}, {R(7)}, {sDW}, 0 offen"),
                     t(f"buffer_load_dwordx4 {R(36,4)}, {R(8)}, {sDW}, 0 offen")]
        t("s_mov_b32 s16, s42"); t("s_mov_b32 s17, s43")
        t(f"s_add_u32 {sT0}, {sT0}, {sT1}")
        t(f"s_add_u32 s20, s44, {sT0}"); t("s_addc_u32 s21, s45, 0")
        t("s_mov_b32 s24, s48"); t("s_mov_b32 s25, s49"); t("s_mov_b32 s26, 0x10000000"); t("s_mov_b32 s27, 0x20000")
        t(f"s_mov_b32 {sK}, {hex(f2u(-LN2))}")
        t(f"s_mov_b32 {sK2}, {hex(f2u(-LOG2E))}")

    def addr_rest(self, t):
        l, h, a, b, c, d = R(0), R(1), R(2), R(3), R(4), R(5)
        e, f = R(9), R(10)
        t(f"s_mul_i32 {sT0}, {sWAVE}, {GSZ}")
        t(f"s_add_u32 {sT0}, {sT0}, {GB}")
        t(f"v_mul_u32_u24 {e}, 144, {a}")
        t(f"v_add3_u32 v{vGR}, {e}, {d}, {sT0}")
        t(f"v_and_b32 {e}, 31, {l}")
        t(f"v_mul_u32_u24 {e}, 144, {e}")
        t(f"v_lshlrev_b32 {f}, 4, {h}")
        t(f"v_add3_u32 v{vGW}, {e}, {f}, {sT0}")
        t(f"s_mul_i32 {sT1}, {sWAVE}, {TSZ}")
        t(f"s_add_u32 {sT1}, {sT1}, {TB + 19*4}")
        t(f"v_and_b32 {e}, 1, {c}")
        t(f"v_mul_u32_u24 {e}, 72, {e}")
        t(f"v_lshrrev_b32 {f}, 1, {c}")
        t(f"v_lshl_add_u32 {e}, {f}, 2, {e}")
        t(f"v_mul_u32_u24 {f}, 304, {b}")
        t(f"v_sub_u32 {f}, {f}, {e}")
        t(f"v_add_u32 v{vT}, {sT1}, {f}")
        t(f"s_lshl_b32 {sT0}, {sWAVE}, 11")
        t(f"s_add_u32 {sT0}, {sT0}, {SB}")
        t(f"v_lshl_add_u32 v{vSW}, {l}, 4, {sT0}")
        t(f"v_bfe_u32 {e}, {l}, 2, 2")
        t(f"v_lshlrev_b32 {e}, 6, {e}")
        t(f"v_lshl_or_b32 {e}, {h}, 9, {e}")
        t(f"v_bfe_u32 {f}, {l}, 4, 1")
        t(f"v_lshl_or_b32 {e}, {f}, 5, {e}")
        t(f"v_lshl_or_b32 {f}, {c}, 3, {e}")
        t(f"v_add_u32 v{vTR}, {SB}, {f}")
        t(f"v_add_u32 {R(55)}, {sT0}, {f}")
        t(f"v_mov_b32 {R(11)}, {f}")
        t(f"v_and_b32 {e}, 0x13, {l}")
        t(f"v_bfe_u32 {f}, {l}, 2, 1")
        t(f"v_lshl_or_b32 {e}, {f}, 3, {e}")
        t(f"v_bfe_u32 {f}, {l}, 3, 1")
        t(f"v_lshl_or_b32 {e}, {f}, 2, {e}")
        t(f"v_lshrrev_b32 {f}, 1, {e}")
        t(f"v_mul_u32_u24 {f}, 1056, {f}")
        t(f"v_and_b32 {e}, 1, {e}")
        t(f"v_lshl_add_u32 {f}, {e}, 9, {f}")
        t(f"v_xor_b32 {e}, {e}, {h}")
        t(f"v_lshl_add_u32 v{vXA}, {e}, 4, {f}")

    def xdma(self, t, c, pairs, tmp):
        hs = []
        t(f"s_and_b32 {sT0}, {sWAVE}, 3")
        t(f"s_lshl_b32 {sT1}, {sT0}, 12")
        t(f"s_add_u32 {sT1}, {sT1}, {sXROW}")
        t(f"s_add_u32 {sT1}, {sT1}, {c*16384}")
        t(f"s_mul_i32 {sT0}, {sT0}, {4*1056}")
        for q in range(4):
            t(f"v_add_u32 {tmp}, {sT1}, v{vXG}")
            t(f"s_add_u32 m0, {sT0}, {XB + (c%3)*XSZ + q*1056}")
            if q < 3: t(f"s_add_u32 {sT1}, {sT1}, 1024")
            hs.append(t(f"buffer_load_dwordx4 {tmp}, {sX}, 0 offen nt lds"))
        return hs

    def w1load(self, t, s):
        t(f"s_mov_b32 {sT0}, {s*16384}")
        t(f"buffer_load_dwordx4 {V(W1a(s),4)}, {R(54)}, {sW1}, {sT0} offen")
        t(f"buffer_load_dwordx4 {V(W1b(s),4)}, {R(54)}, {sW1}, {sT0} offen offset:512")
    def w2load(self, t, s):
        t(f"s_mov_b32 {sT0}, {s*8192}")
        t(f"buffer_load_dwordx4 {V(W2f(s),4)}, v{vOG}, {sW2}, {sT0} offen")

    def tbuild(self, t):
        l, h = R(0), R(1)
        z = R(12, 4)
        for i in range(4): t(f"v_mov_b32 {R(12+i)}, 0")
        t(f"s_mul_i32 {sT1}, {sWAVE}, {TSZ}")
        t(f"s_add_u32 {sT1}, {sT1}, {TB}")
        t(f"v_lshl_add_u32 {R(16)}, {l}, 4, {sT1}")
        for off in (0, 1024, 2048, 3072, TSZ-1024): t(f"ds_write_b128 {R(16)}, {z} offset:{off}")
        t(f"s_mul_i32 {sT0}, {sWAVE}, {GSZ}")
        t(f"s_add_u32 {sT0}, {sT0}, {GB}")
        t(f"v_lshl_add_u32 {R(16)}, {l}, 4, {sT0}")
        t(f"v_add_u32 {R(17)}, {sT0}, {R(11)}")
        t(f"ds_write_b128 {R(16)}, {z}")
        e, f, g = R(18), R(19), R(20)
        t(f"v_bfe_u32 {e}, {l}, 2, 2")
        t(f"v_and_b32 {f}, 13, {l}")
        t(f"v_bcnt_u32_b32 {f}, {f}, 0")
        t(f"v_and_b32 {f}, 1, {f}")
        t(f"v_lshl_or_b32 {f}, {e}, 1, {f}")
        t(f"v_bfe_u32 {e}, {l}, 1, 1")
        t(f"v_lshl_or_b32 {f}, {e}, 3, {f}")
        t(f"v_mul_u32_u24 {f}, 304, {f}")
        t(f"v_bfe_u32 {e}, {l}, 4, 1")
        t(f"v_mul_u32_u24 {e}, 144, {e}")
        t(f"v_lshl_add_u32 {g}, {h}, 4, {sT1}")
        t(f"v_add3_u32 {g}, {e}, {f}, {g}")
        t(f"ds_write_b128 {R(16)}, {R(32,4)} offset:64")
        t(f"ds_write_b128 {R(16)}, {R(36,4)} offset:{64+1024}")
        for v in range(2):
            for u in range(2):
                t(f"ds_read_b64_tr_b16 {R(32+4*v+2*u,2)}, {R(17)} offset:{64 + v*1024 + u*256}")
        for v in range(2):
            for u in range(2):
                t(f"ds_read_b64_tr_b16 {R(40+4*v+2*u,2)}, {R(17)} offset:{v*1024 + u*256}")
        for v in range(2):
            t(f"ds_write2_b64 {g}, {R(32+4*v,2)}, {R(34+4*v,2)} offset0:{1+4*v} offset1:{2+4*v}")
        for v in range(2):
            for u in range(2):
                t(f"ds_write2_b32 {g}, {R(40+4*v+2*u)}, {R(41+4*v+2*u)} offset0:{19+8*v+2*u} offset1:{20+8*v+2*u}")

    def xread(self, t, c, s):
        t(f"ds_read_b128 {R(32+4*(s%4),4)}, v{vXA} offset:{XB + (c%3)*XSZ + 32*s}")
    def mm1(self, t, s, which):
        acc = R(0,16) if which == 0 else R(16,16)
        w = V(W1a(s),4) if which == 0 else V(W1b(s),4)
        t(f"v_mfma_f32_32x32x16_bf16 {acc}, {R(32+4*(s%4),4)}, {w}, {acc if s else 0}")

    def g1p(self, t, c, extra):
        LAG = 1
        for s in range(16 + LAG):
            if s < 16:
                for f in extra.get(s, []): f()
                t(f"ds_write_b128 v{vSW}, {V(W1a(s),4)}")
                t(f"ds_write_b128 v{vSW}, {V(W1b(s),4)} offset:1024")
                self.xread(t, c, s)
                for u in range(2): t(f"ds_read_b64_tr_b16 {V(W1b(s)+2*u,2)}, {R(55)} offset:{1024+256*u}")
                for u in range(2): t(f"ds_read_b64_tr_b16 {V(W1a(s)+2*u,2)}, {R(55)} offset:{256*u}")
            if s >= LAG:
                self.mm1(t, s-LAG, 1); self.mm1(t, s-LAG, 0)

    def g1_pre(self, t, c):
        for s in range(4): self.xread(t, c, s)
    def g1(self, t, c, pre=True, extra={}):
        if pre: self.g1_pre(t, c)
        for s in range(16):
            self.mm1(t, s, 1); self.mm1(t, s, 0)
            if s + 4 < 16: self.xread(t, c, s+4)
            for f in extra.get(s, []): f()

    def w2fix(self, t):
        a, b = R(54), R(53)
        t(f"s_lshl_b32 {sT0}, {sWAVE}, 11")
        t(f"v_bfe_u32 {a}, v{vTR}, 3, 1")
        t(f"v_bfe_u32 {b}, v{vTR}, 4, 1")
        t(f"v_xor_b32 {a}, {a}, {b}")
        t(f"v_mul_u32_u24 {a}, 24, {a}")
        t(f"v_xor_b32 {a}, {a}, v{vTR}")
        t(f"v_add_u32 {a}, {sT0}, {a}")
        for s in range(16):
            off = (s % 2) * 1024
            t(f"ds_write_b128 v{vSW}, {V(W2f(s),4)} offset:{off}")
            for u in range(2): t(f"ds_read_b64_tr_b16 {V(W2f(s)+2*u,2)}, {a} offset:{off+256*u}")

    def tread(self, t, gi, s):
        t(f"ds_read2_b32 {R(32+2*s,2)}, v{vT} offset0:{36*gi+2*s} offset1:{36*gi+2*s+1}")
    def glu(self, t, c, tpre=True):
        if tpre:
            for s in range(9): self.tread(t, 0, s)
        for half in range(2):
            idx = range(8*half, 8*half+8)
            for i in idx: t(f"v_mul_f32 {R(16+i)}, {sK2}, {R(16+i)}")
            for i in idx: t(f"v_exp_f32 {R(16+i)}, {R(16+i)}")
            for i in idx: t(f"v_fma_f32 {R(16+i)}, {R(16+i)}, {sK}, {sK}")
            for i in idx: t(f"v_rcp_f32 {R(16+i)}, {R(16+i)}")
            for i in idx: t(f"v_mul_f32 {R(i)}, {R(i)}, {R(16+i)}")
            for k in range(4): t(f"v_cvt_pk_bf16_f32 {R(4*half+k)}, {R(8*half+2*k)}, {R(8*half+2*k+1)}")
            t(f"ds_write_b128 v{vGW}, {R(4*half,4)} offset:{(c%2)*64 + 32*half}")

    def dread(self, t, o, gi, e):
        base = gi*2304
        if o % 2 == 0: a, off = f"v{vGR}", 16*e
        elif e == 0: a, off = f"v{vGR}", 64
        elif e == 4: a, off = f"v{vGR}", 0
        else: a, off = [None, R(54), R(55), f"v{vXG}"][e], 0
        t(f"ds_read_b128 {R(8+4*e,4)}, {a} offset:{base+off}")
    def wrapaddr(self, t):
        for e, dst in ((1, R(54)), (2, R(55)), (3, f"v{vXG}")):
            t(f"v_and_b32 {R(53)}, 48, v{vSW}")
            t(f"v_add_u32 {dst}, {64+16*e}, {R(53)}")
            t(f"v_and_b32 {dst}, 127, {dst}")
            t(f"v_sub_u32 {dst}, {dst}, {R(53)}")
            t(f"v_add_u32 {dst}, {dst}, v{vGR}")
    def cv(self, t, o, gi):
        acc = [R(0,4), R(4,4)] if gi == 0 else [R(28,4), R(50,4)]
        for s in range(9):
            for z in range(2):
                t(f"v_mfma_f32_4x4x4_16b_bf16 {acc[z]}, {R(32+2*s,2)}, {R(8+2*(z+s),2)}, {acc[z] if s else 0}")
            if gi == 0:
                self.tread(t, 1, s)
                if s % 2 == 1: self.dread(t, o, 1, s//2)
        if gi == 0: self.dread(t, o, 1, 4)
    def si(self, t, o, gi):
        if gi == 0: y = list(range(0, 8)); tmp = [28,29,30,31,50,51,52,53]; pk = 0
        else: y = [28,29,30,31,50,51,52,53]; tmp = list(range(8, 16)); pk = 4
        for i in range(8): t(f"v_exp_f32 {R(tmp[i])}, {R(y[i])}")
        for i in range(8): t(f"v_fma_f32 {R(tmp[i])}, {R(tmp[i])}, {sK2}, {sK2}")
        for i in range(8): t(f"v_rcp_f32 {R(tmp[i])}, {R(tmp[i])}")
        for i in range(8): t(f"v_mul_f32 {R(tmp[i])}, {R(y[i])}, {R(tmp[i])}")
        for k in range(4): t(f"v_cvt_pk_bf16_f32 {R(pk+k)}, {R(tmp[2*k])}, {R(tmp[2*k+1])}")
        t(f"ds_write_b128 v{vSW}, {R(pk,4)} offset:{(o%2)*16384 + gi*1024}")
    def conv_silu(self, t, o):
        for e in range(5): self.dread(t, o, 0, e)
        t("s_setprio 2")
        self.cv(t, o, 0)
        self.si(t, o, 0)
        self.cv(t, o, 1)
        t("s_setprio 0")
        self.si(t, o, 1)

    def sread(self, t, o, s):
        for u in range(2):
            t(f"ds_read_b64_tr_b16 {R(32+4*(s%4)+2*u,2)}, v{vTR} offset:{(o%2)*16384 + s*1024 + u*256}")
    def g2(self, t, o):
        for s in range(4): self.sread(t, o, s)
        acc = R(16, 16)
        for s in range(16):
            t(f"v_mfma_f32_32x32x16_bf16 {acc}, {V(W2f(s),4)}, {R(32+4*(s%4),4)}, {acc if s else 0}")
            if s + 4 < 16: self.sread(t, o, s+4)
    def out(self, t, o, half):
        for j in range(2):
            for k in range(4): t(f"v_cvt_pk_bf16_f32 {R(8*0+4*j+k)}, {R(16+8*j+2*k)}, {R(16+8*j+2*k+1)}")
            t(f"ds_write_b128 v{vGW}, {R(4*j,4)} offset:{half*64 + 32*j}")
        for j in range(2):
            t(f"ds_read_b128 {R(4*j,4)}, v{vGR} offset:{half*64 + j*2304}")
        for j in range(2):
            t(f"s_mov_b32 {sT0}, {o*16384 + j*8192}")
            t(f"buffer_store_dwordx4 {R(4*j,4)}, v{vOG}, {sO}, {sT0} offen sc1")
    def barrier(self, t, name, *handles):
        t.wait_op(*handles)
        t.wait_lds()
        self.stamp(t, name + "<")
        t("s_barrier")
        self.stamp(t, name + ">")

    def finish(self, t):
        if self.stamps:
            self.stamp(t, "end0")
            t.wait_vm()
            self.stamp(t, "end1")
            t("s_waitcnt lgkmcnt(0)")
            t(f"s_lshl_b32 {sT0}, s2, 3"); t(f"s_add_u32 {sT0}, {sT0}, {sWAVE}"); t(f"s_lshl_b32 {sT0}, {sT0}, 7")
            t(f"v_mov_b32 {R(1)}, 0")
            for k in range(t.nstamp):
                t(f"v_mov_b32 {R(0)}, s{STAMP0+2*k}")
                t(f"buffer_store_dword {R(0)}, {R(1)}, {sWS}, {sT0} offen offset:{4*k}")
        t("s_endpgm")

    def path_L(self, t):
        x0 = self.xdma(t, 0, None, R(9))
        for s in range(8): self.w1load(t, s)
        self.addr_rest(t)
        self.tbuild(t)
        self.barrier(t, "B0", *x0)
        x2 = []
        ex = {s: [lambda s=s: self.w1load(t, s+8)] for s in range(8)}
        ex[8] = [lambda: x2.extend(self.xdma(t, 2, None, R(53)))]
        self.g1p(t, 0, ex)
        self.glu(t, 0, tpre=False)
        self.barrier(t, "B1")
        self.g1(t, 1, extra={s: [lambda s=s: self.w2load(t, s)] for s in range(16)})
        self.stamp(t, "g1(1)")
        self.glu(t, 1)
        self.w2fix(t)
        self.conv_silu(t, 0)
        self.barrier(t, "B2", *x2)
        x3 = self.xdma(t, 3, None, R(53))
        x4 = self.xdma(t, 4, None, R(53))
        self.wrapaddr(t)
        self.g1(t, 2)
        self.barrier(t, "B3", *x3)
        for n in range(1, 4):
            self.glu(t, n+1)
            self.conv_silu(t, n)
            self.stamp(t, f"Y{n}")
            self.g2(t, n-1)
            self.out(t, n-1, n % 2)
            if n < 3: self.g1(t, n+2)
            self.barrier(t, f"B{n+3}", *x4)
        self.g2(t, 3)
        self.out(t, 3, 0)
        self.finish(t)

    def path_F(self, t):
        t("s_setprio 3")
        x1 = self.xdma(t, 1, None, R(9))
        t("s_setprio 0")
        self.addr_rest(t)
        self.tbuild(t)
        self.barrier(t, "B0")
        for s in range(8): self.w1load(t, s)
        self.barrier(t, "B1", *x1)
        ex = {s: [lambda s=s: self.w1load(t, s+8)] for s in range(8)}
        for s in range(8): ex[8+s] = [lambda s=s: (self.w2load(t, 2*s), self.w2load(t, 2*s+1))]
        self.g1p(t, 0, ex)
        self.stamp(t, "g1p")
        self.glu(t, 0, tpre=False)
        self.g1(t, 1)
        self.barrier(t, "B2")
        self.glu(t, 1)
        self.w2fix(t)
        self.conv_silu(t, 0)
        self.wrapaddr(t)
        self.barrier(t, "B3")
        for n in range(1, 4):
            self.g2(t, n-1)
            self.out(t, n-1, (n-1) % 2)
            self.g1(t, n+1)
            self.stamp(t, f"X{n}")
            self.glu(t, n+1)
            self.conv_silu(t, n)
            self.barrier(t, f"B{n+3}")
        self.g2(t, 3)
        self.out(t, 3, 0)
        self.finish(t)

    def build(self):
        t = Trace()
        self.prologue(t)
        t(f"s_cmp_ge_u32 {sWAVE}, 4")
        t("s_cbranch_scc1 L_F")
        tl = Trace(t); tl.nstamp = t.nstamp; tl.stamp_names = list(t.stamp_names)
        self.path_L(tl)
        tf = Trace(t); tf.nstamp = t.nstamp; tf.stamp_names = list(t.stamp_names)
        self.path_F(tf)
        self.names = {'L': tl.stamp_names, 'F': tf.stamp_names}
        head = open('cdna_kernels/' + NAME + '.s.ref').read().split('\n')
        hdr = [x for x in head if x.startswith(';') and '@launch' not in x]
        s = '\n'.join(hdr) + f"\n; @launch grid=(250,1,1) block=(512,1,1) lds={LDS}\n"
        s += f""".amdgcn_target "amdgcn-amd-amdhsa--gfx950"
.text
.globl {NAME}_kernel
.p2align 8
.type {NAME}_kernel,@function
{NAME}_kernel:
"""
        s += '\n'.join(t.out) + '\n' + '\n'.join(tl.out) + '\nL_F:\n' + '\n'.join(tf.out) + '\nL_end:\n    s_endpgm\n'
        s += f""".section .rodata,"a"
.p2align 6
.amdhsa_kernel {NAME}_kernel
  .amdhsa_next_free_vgpr 256
  .amdhsa_next_free_sgpr 102
  .amdhsa_accum_offset 256
  .amdhsa_group_segment_fixed_size 0
  .amdhsa_kernarg_size 56
  .amdhsa_user_sgpr_count 2
  .amdhsa_user_sgpr_kernarg_segment_ptr 1
  .amdhsa_system_sgpr_workgroup_id_x 1
.end_amdhsa_kernel
"""
        return s

if __name__ == "__main__":
    import json
    g = Gen(stamps=False); open('cdna_kernels/' + NAME + '.s', 'w').write(g.build())
    g = Gen(stamps=True); open('diag.s', 'w').write(g.build())
    json.dump(g.names, open('diag.json', 'w'))
```

```python
import sys, struct
from asmlib import Trace
NAME = "standalone__conformer_conv_module__speech"
def f2u(x): return struct.unpack('<I', struct.pack('<f', x))[0]
LOG2E = 1.4426950408889634; LN2 = 0.6931471805599453

XB, XSZ = 0, 16896
SB = 50688
GB, GSZ = 83456, 4608
TB, TSZ = 120320, 4864
LDS = 159744
vXA, vTR, vGW, vGR, vT, vSW, vOG, vXG = range(8)
R0 = 8
def R(i, n=1): return f"v{R0+i}" if n == 1 else f"v[{R0+i}:{R0+i+n-1}]"
W1 = 64; W2 = 192
def V(i, n=1): return f"v{i}" if n == 1 else f"v[{i}:{i+n-1}]"
def W1a(s): return W1 + 8*s
def W1b(s): return W1 + 8*s + 4
def W2f(s): return W2 + 4*s
sX, sW1, sDW, sW2, sO, sWS, sDBG = "s[4:7]", "s[8:11]", "s[12:15]", "s[16:19]", "s[20:23]", "s[24:27]", "s[28:31]"
sWAVE, sXROW, sT0, sT1, sK, sK2 = "s32", "s33", "s34", "s35", "s50", "s51"
STAMP0 = 52

class Gen:
    def __init__(self, stamps=False, opts=None):
        self.stamps = stamps; self.o = opts or {}
        self.names = {}
    def stamp(self, t, name):
        if not self.stamps: return
        k = t.nstamp; t.nstamp += 1
        assert STAMP0 + 2*k + 1 <= 97
        t.stamp_names.append(name)
        t(f"s_memtime s[{STAMP0+2*k}:{STAMP0+2*k+1}]")

    def prologue(self, t):
        t.nstamp = 0; t.stamp_names = []
        self.stamp(t, "start")
        if self.stamps: t("s_memrealtime s[98:99]")
        t("s_cmp_ge_u32 s2, 250")
        t("s_cbranch_scc1 L_end")
        t("s_load_dwordx8 s[36:43], s[0:1], 0")
        t("s_load_dwordx4 s[44:47], s[0:1], 32")
        t("s_load_dwordx2 s[48:49], s[0:1], 48")
        l, h, a, b, c, d = R(0), R(1), R(2), R(3), R(4), R(5)
        t(f"v_lshrrev_b32 {a}, 6, v0")
        t(f"v_and_b32 {l}, 63, v0")
        t(f"v_readfirstlane_b32 {sWAVE}, {a}")
        t(f"v_lshrrev_b32 {h}, 5, {l}")
        t(f"v_xor_b32 {a}, {l}, {h}")
        t(f"v_lshlrev_b32 v{vXG}, 4, {a}")
        t(f"v_bfe_u32 {a}, {l}, 2, 3")
        t(f"v_bcnt_u32_b32 {a}, {a}, 0")
        t(f"v_and_b32 {a}, 1, {a}")
        t(f"v_lshl_or_b32 {a}, {h}, 1, {a}")
        t(f"v_bfe_u32 {b}, {l}, 3, 2")
        t(f"v_lshl_or_b32 {a}, {b}, 2, {a}")
        t(f"v_and_b32 {c}, 3, {l}")
        t(f"s_lshl_b32 {sT0}, {sWAVE}, 6")
        t(f"v_lshlrev_b32 {d}, 4, {c}")
        t(f"v_add_u32 {R(6)}, {sT0}, {d}")
        t(f"v_lshl_add_u32 v{vOG}, {a}, 9, {R(6)}")
        t(f"v_lshrrev_b32 {b}, 2, {l}")
        t(f"v_lshl_add_u32 {R(7)}, {b}, 9, {R(6)}")
        t(f"v_lshl_add_u32 {R(54)}, {b}, 10, {R(6)}")
        t("s_cmp_ge_u32 s2, 125")
        t(f"s_cselect_b32 {sT0}, 8192000, 0")
        t(f"s_cselect_b32 {sT1}, 125, 0")
        t(f"s_sub_u32 {sT1}, s2, {sT1}")
        t(f"s_lshl_b32 {sT1}, {sT1}, 16")
        t(f"s_sub_u32 {sXROW}, {sT1}, 8192")
        t("s_mov_b32 s6, 8192000"); t("s_mov_b32 s7, 0x20000")
        t("s_mov_b32 s10, 262144"); t("s_mov_b32 s11, 0x20000")
        t("s_mov_b32 s14, 15872"); t("s_mov_b32 s15, 0x20000")
        t("s_mov_b32 s18, 131072"); t("s_mov_b32 s19, 0x20000")
        t("s_mov_b32 s22, 65536"); t("s_mov_b32 s23, 0x20000")
        t("s_waitcnt lgkmcnt(0)")
        t(f"s_add_u32 s4, s36, {sT0}"); t("s_addc_u32 s5, s37, 0")
        t("s_mov_b32 s12, s40"); t("s_mov_b32 s13, s41")
        t("s_mov_b32 s8, s38"); t("s_mov_b32 s9, s39")
        t(f"v_add_u32 {R(8)}, 8192, {R(7)}")
        self.dwld = [t(f"buffer_load_dwordx4 {R(32,4)}, {R(7)}, {sDW}, 0 offen"),
                     t(f"buffer_load_dwordx4 {R(36,4)}, {R(8)}, {sDW}, 0 offen")]
        t("s_mov_b32 s16, s42"); t("s_mov_b32 s17, s43")
        t(f"s_add_u32 {sT0}, {sT0}, {sT1}")
        t(f"s_add_u32 s20, s44, {sT0}"); t("s_addc_u32 s21, s45, 0")
        t("s_mov_b32 s24, s48"); t("s_mov_b32 s25, s49"); t("s_mov_b32 s26, 0x10000000"); t("s_mov_b32 s27, 0x20000")
        t(f"s_mov_b32 {sK}, {hex(f2u(-LN2))}")
        t(f"s_mov_b32 {sK2}, {hex(f2u(-LOG2E))}")

    def addr_rest(self, t):
        l, h, a, b, c, d = R(0), R(1), R(2), R(3), R(4), R(5)
        e, f = R(9), R(10)
        t(f"s_mul_i32 {sT0}, {sWAVE}, {GSZ}")
        t(f"s_add_u32 {sT0}, {sT0}, {GB}")
        t(f"v_mul_u32_u24 {e}, 144, {a}")
        t(f"v_add3_u32 v{vGR}, {e}, {d}, {sT0}")
        t(f"v_and_b32 {e}, 31, {l}")
        t(f"v_mul_u32_u24 {e}, 144, {e}")
        t(f"v_lshlrev_b32 {f}, 4, {h}")
        t(f"v_add3_u32 v{vGW}, {e}, {f}, {sT0}")
        t(f"s_mul_i32 {sT1}, {sWAVE}, {TSZ}")
        t(f"s_add_u32 {sT1}, {sT1}, {TB + 19*4}")
        t(f"v_and_b32 {e}, 1, {c}")
        t(f"v_mul_u32_u24 {e}, 72, {e}")
        t(f"v_lshrrev_b32 {f}, 1, {c}")
        t(f"v_lshl_add_u32 {e}, {f}, 2, {e}")
        t(f"v_mul_u32_u24 {f}, 304, {b}")
        t(f"v_sub_u32 {f}, {f}, {e}")
        t(f"v_add_u32 v{vT}, {sT1}, {f}")
        t(f"s_lshl_b32 {sT0}, {sWAVE}, 11")
        t(f"s_add_u32 {sT0}, {sT0}, {SB}")
        t(f"v_lshl_add_u32 v{vSW}, {l}, 4, {sT0}")
        t(f"v_bfe_u32 {e}, {l}, 2, 2")
        t(f"v_lshlrev_b32 {e}, 6, {e}")
        t(f"v_lshl_or_b32 {e}, {h}, 9, {e}")
        t(f"v_bfe_u32 {f}, {l}, 4, 1")
        t(f"v_lshl_or_b32 {e}, {f}, 5, {e}")
        t(f"v_lshl_or_b32 {f}, {c}, 3, {e}")
        t(f"v_add_u32 v{vTR}, {SB}, {f}")
        t(f"v_add_u32 {R(55)}, {sT0}, {f}")
        t(f"v_mov_b32 {R(11)}, {f}")
        t(f"v_and_b32 {e}, 0x13, {l}")
        t(f"v_bfe_u32 {f}, {l}, 2, 1")
        t(f"v_lshl_or_b32 {e}, {f}, 3, {e}")
        t(f"v_bfe_u32 {f}, {l}, 3, 1")
        t(f"v_lshl_or_b32 {e}, {f}, 2, {e}")
        t(f"v_lshrrev_b32 {f}, 1, {e}")
        t(f"v_mul_u32_u24 {f}, 1056, {f}")
        t(f"v_and_b32 {e}, 1, {e}")
        t(f"v_lshl_add_u32 {f}, {e}, 9, {f}")
        t(f"v_xor_b32 {e}, {e}, {h}")
        t(f"v_lshl_add_u32 v{vXA}, {e}, 4, {f}")

    def xdma(self, t, c, pairs, tmp):
        hs = []
        t(f"s_and_b32 {sT0}, {sWAVE}, 3")
        t(f"s_lshl_b32 {sT1}, {sT0}, 12")
        t(f"s_add_u32 {sT1}, {sT1}, {sXROW}")
        t(f"s_add_u32 {sT1}, {sT1}, {c*16384}")
        t(f"s_mul_i32 {sT0}, {sT0}, {4*1056}")
        for q in range(4):
            t(f"v_add_u32 {tmp}, {sT1}, v{vXG}")
            t(f"s_add_u32 m0, {sT0}, {XB + (c%3)*XSZ + q*1056}")
            if q < 3: t(f"s_add_u32 {sT1}, {sT1}, 1024")
            hs.append(t(f"buffer_load_dwordx4 {tmp}, {sX}, 0 offen nt lds"))
        return hs

    def w1load(self, t, s):
        t(f"s_mov_b32 {sT0}, {s*16384}")
        t(f"buffer_load_dwordx4 {V(W1a(s),4)}, {R(54)}, {sW1}, {sT0} offen")
        t(f"buffer_load_dwordx4 {V(W1b(s),4)}, {R(54)}, {sW1}, {sT0} offen offset:512")
    def w2load(self, t, s):
        t(f"s_mov_b32 {sT0}, {s*8192}")
        t(f"buffer_load_dwordx4 {V(W2f(s),4)}, v{vOG}, {sW2}, {sT0} offen")

    def tbuild(self, t):
        l, h = R(0), R(1)
        z = R(12, 4)
        for i in range(4): t(f"v_mov_b32 {R(12+i)}, 0")
        t(f"s_mul_i32 {sT1}, {sWAVE}, {TSZ}")
        t(f"s_add_u32 {sT1}, {sT1}, {TB}")
        t(f"v_lshl_add_u32 {R(16)}, {l}, 4, {sT1}")
        for off in (0, 1024, 2048, 3072, TSZ-1024): t(f"ds_write_b128 {R(16)}, {z} offset:{off}")
        t(f"s_mul_i32 {sT0}, {sWAVE}, {GSZ}")
        t(f"s_add_u32 {sT0}, {sT0}, {GB}")
        t(f"v_lshl_add_u32 {R(16)}, {l}, 4, {sT0}")
        t(f"v_add_u32 {R(17)}, {sT0}, {R(11)}")
        t(f"ds_write_b128 {R(16)}, {z}")
        e, f, g = R(18), R(19), R(20)
        t(f"v_bfe_u32 {e}, {l}, 2, 2")
        t(f"v_and_b32 {f}, 13, {l}")
        t(f"v_bcnt_u32_b32 {f}, {f}, 0")
        t(f"v_and_b32 {f}, 1, {f}")
        t(f"v_lshl_or_b32 {f}, {e}, 1, {f}")
        t(f"v_bfe_u32 {e}, {l}, 1, 1")
        t(f"v_lshl_or_b32 {f}, {e}, 3, {f}")
        t(f"v_mul_u32_u24 {f}, 304, {f}")
        t(f"v_bfe_u32 {e}, {l}, 4, 1")
        t(f"v_mul_u32_u24 {e}, 144, {e}")
        t(f"v_lshl_add_u32 {g}, {h}, 4, {sT1}")
        t(f"v_add3_u32 {g}, {e}, {f}, {g}")
        t(f"ds_write_b128 {R(16)}, {R(32,4)} offset:64")
        t(f"ds_write_b128 {R(16)}, {R(36,4)} offset:{64+1024}")
        for v in range(2):
            for u in range(2):
                t(f"ds_read_b64_tr_b16 {R(32+4*v+2*u,2)}, {R(17)} offset:{64 + v*1024 + u*256}")
        for v in range(2):
            for u in range(2):
                t(f"ds_read_b64_tr_b16 {R(40+4*v+2*u,2)}, {R(17)} offset:{v*1024 + u*256}")
        for v in range(2):
            t(f"ds_write2_b64 {g}, {R(32+4*v,2)}, {R(34+4*v,2)} offset0:{1+4*v} offset1:{2+4*v}")
        for v in range(2):
            for u in range(2):
                t(f"ds_write2_b32 {g}, {R(40+4*v+2*u)}, {R(41+4*v+2*u)} offset0:{19+8*v+2*u} offset1:{20+8*v+2*u}")

    def xread(self, t, c, s):
        t(f"ds_read_b128 {R(32+4*(s%4),4)}, v{vXA} offset:{XB + (c%3)*XSZ + 32*s}")
    def mm1(self, t, s, which):
        acc = R(0,16) if which == 0 else R(16,16)
        w = V(W1a(s),4) if which == 0 else V(W1b(s),4)
        t(f"v_mfma_f32_32x32x16_bf16 {acc}, {R(32+4*(s%4),4)}, {w}, {acc if s else 0}")

    def g1p(self, t, c, extra):
        LAG = 1
        for s in range(16 + LAG):
            if s < 16:
                for f in extra.get(s, []): f()
                t(f"ds_write_b128 v{vSW}, {V(W1a(s),4)}")
                t(f"ds_write_b128 v{vSW}, {V(W1b(s),4)} offset:1024")
                self.xread(t, c, s)
                for u in range(2): t(f"ds_read_b64_tr_b16 {V(W1b(s)+2*u,2)}, {R(55)} offset:{1024+256*u}")
                for u in range(2): t(f"ds_read_b64_tr_b16 {V(W1a(s)+2*u,2)}, {R(55)} offset:{256*u}")
            if s >= LAG:
                self.mm1(t, s-LAG, 1); self.mm1(t, s-LAG, 0)

    def g1_pre(self, t, c):
        for s in range(4): self.xread(t, c, s)
    def g1(self, t, c, pre=True, extra={}):
        if pre: self.g1_pre(t, c)
        for s in range(16):
            self.mm1(t, s, 1); self.mm1(t, s, 0)
            if s + 4 < 16: self.xread(t, c, s+4)
            for f in extra.get(s, []): f()

    def w2fix(self, t):
        a, b = R(54), R(53)
        t(f"s_lshl_b32 {sT0}, {sWAVE}, 11")
        t(f"v_bfe_u32 {a}, v{vTR}, 3, 1")
        t(f"v_bfe_u32 {b}, v{vTR}, 4, 1")
        t(f"v_xor_b32 {a}, {a}, {b}")
        t(f"v_mul_u32_u24 {a}, 24, {a}")
        t(f"v_xor_b32 {a}, {a}, v{vTR}")
        t(f"v_add_u32 {a}, {sT0}, {a}")
        for s in range(16):
            off = (s % 2) * 1024
            t(f"ds_write_b128 v{vSW}, {V(W2f(s),4)} offset:{off}")
            for u in range(2): t(f"ds_read_b64_tr_b16 {V(W2f(s)+2*u,2)}, {a} offset:{off+256*u}")

    def tread(self, t, gi, s):
        t(f"ds_read2_b32 {R(32+2*s,2)}, v{vT} offset0:{36*gi+2*s} offset1:{36*gi+2*s+1}")
    def glu(self, t, c, tpre=True):
        if tpre:
            for s in range(9): self.tread(t, 0, s)
        for half in range(2):
            idx = range(8*half, 8*half+8)
            for i in idx: t(f"v_mul_f32 {R(16+i)}, {sK2}, {R(16+i)}")
            for i in idx: t(f"v_exp_f32 {R(16+i)}, {R(16+i)}")
            for i in idx: t(f"v_fma_f32 {R(16+i)}, {R(16+i)}, {sK}, {sK}")
            for i in idx: t(f"v_rcp_f32 {R(16+i)}, {R(16+i)}")
            for i in idx: t(f"v_mul_f32 {R(i)}, {R(i)}, {R(16+i)}")
            for k in range(4): t(f"v_cvt_pk_bf16_f32 {R(4*half+k)}, {R(8*half+2*k)}, {R(8*half+2*k+1)}")
            t(f"ds_write_b128 v{vGW}, {R(4*half,4)} offset:{(c%2)*64 + 32*half}")

    def dread(self, t, o, gi, e):
        base = gi*2304
        if o % 2 == 0: a, off = f"v{vGR}", 16*e
        elif e == 0: a, off = f"v{vGR}", 64
        elif e == 4: a, off = f"v{vGR}", 0
        else: a, off = [None, R(54), R(55), f"v{vXG}"][e], 0
        t(f"ds_read_b128 {R(8+4*e,4)}, {a} offset:{base+off}")
    def wrapaddr(self, t):
        for e, dst in ((1, R(54)), (2, R(55)), (3, f"v{vXG}")):
            t(f"v_and_b32 {R(53)}, 48, v{vSW}")
            t(f"v_add_u32 {dst}, {64+16*e}, {R(53)}")
            t(f"v_and_b32 {dst}, 127, {dst}")
            t(f"v_sub_u32 {dst}, {dst}, {R(53)}")
            t(f"v_add_u32 {dst}, {dst}, v{vGR}")
    def cv(self, t, o, gi):
        acc = [R(0,4), R(4,4)] if gi == 0 else [R(28,4), R(50,4)]
        for s in range(9):
            for z in range(2):
                t(f"v_mfma_f32_4x4x4_16b_bf16 {acc[z]}, {R(32+2*s,2)}, {R(8+2*(z+s),2)}, {acc[z] if s else 0}")
            if gi == 0:
                self.tread(t, 1, s)
                if s % 2 == 1: self.dread(t, o, 1, s//2)
        if gi == 0: self.dread(t, o, 1, 4)
    def si(self, t, o, gi):
        if gi == 0: y = list(range(0, 8)); tmp = [28,29,30,31,50,51,52,53]; pk = 0
        else: y = [28,29,30,31,50,51,52,53]; tmp = list(range(8, 16)); pk = 4
        for i in range(8): t(f"v_exp_f32 {R(tmp[i])}, {R(y[i])}")
        for i in range(8): t(f"v_fma_f32 {R(tmp[i])}, {R(tmp[i])}, {sK2}, {sK2}")
        for i in range(8): t(f"v_rcp_f32 {R(tmp[i])}, {R(tmp[i])}")
        for i in range(8): t(f"v_mul_f32 {R(tmp[i])}, {R(y[i])}, {R(tmp[i])}")
        for k in range(4): t(f"v_cvt_pk_bf16_f32 {R(pk+k)}, {R(tmp[2*k])}, {R(tmp[2*k+1])}")
        t(f"ds_write_b128 v{vSW}, {R(pk,4)} offset:{(o%2)*16384 + gi*1024}")
    def conv_silu(self, t, o):
        for e in range(5): self.dread(t, o, 0, e)
        t("s_setprio 2")
        self.cv(t, o, 0)
        self.si(t, o, 0)
        self.cv(t, o, 1)
        t("s_setprio 0")
        self.si(t, o, 1)

    def sread(self, t, o, s):
        for u in range(2):
            t(f"ds_read_b64_tr_b16 {R(32+4*(s%4)+2*u,2)}, v{vTR} offset:{(o%2)*16384 + s*1024 + u*256}")
    def g2(self, t, o):
        for s in range(4): self.sread(t, o, s)
        acc = R(16, 16)
        for s in range(16):
            t(f"v_mfma_f32_32x32x16_bf16 {acc}, {V(W2f(s),4)}, {R(32+4*(s%4),4)}, {acc if s else 0}")
            if s + 4 < 16: self.sread(t, o, s+4)
    def out(self, t, o, half):
        for j in range(2):
            for k in range(4): t(f"v_cvt_pk_bf16_f32 {R(8*0+4*j+k)}, {R(16+8*j+2*k)}, {R(16+8*j+2*k+1)}")
            t(f"ds_write_b128 v{vGW}, {R(4*j,4)} offset:{half*64 + 32*j}")
        for j in range(2):
            t(f"ds_read_b128 {R(4*j,4)}, v{vGR} offset:{half*64 + j*2304}")
        for j in range(2):
            t(f"s_mov_b32 {sT0}, {o*16384 + j*8192}")
            t(f"buffer_store_dwordx4 {R(4*j,4)}, v{vOG}, {sO}, {sT0} offen sc1")
    def barrier(self, t, name, *handles):
        t.wait_op(*handles)
        t.wait_lds()
        self.stamp(t, name + "<")
        t("s_barrier")
        self.stamp(t, name + ">")

    def finish(self, t):
        if self.stamps:
            self.stamp(t, "end0")
            t.wait_vm()
            self.stamp(t, "end1")
            t("s_memrealtime s[100:101]")
            t("s_waitcnt lgkmcnt(0)")
            t(f"s_lshl_b32 {sT0}, s2, 3"); t(f"s_add_u32 {sT0}, {sT0}, {sWAVE}"); t(f"s_lshl_b32 {sT0}, {sT0}, 7")
            t(f"v_mov_b32 {R(1)}, 0")
            for k in range(t.nstamp):
                t(f"v_mov_b32 {R(0)}, s{STAMP0+2*k}")
                t(f"buffer_store_dword {R(0)}, {R(1)}, {sWS}, {sT0} offen offset:{4*k}")
            for k, r in ((30, 98), (31, 100)):
                t(f"v_mov_b32 {R(0)}, s{r}")
                t(f"buffer_store_dword {R(0)}, {R(1)}, {sWS}, {sT0} offen offset:{4*k}")
        t("s_endpgm")

    def path_L(self, t):
        x0 = self.xdma(t, 0, None, R(9))
        for s in range(8): self.w1load(t, s)
        self.addr_rest(t)
        self.tbuild(t)
        self.barrier(t, "B0", *x0)
        x2 = []
        ex = {s: [lambda s=s: self.w1load(t, s+8)] for s in range(8)}
        ex[8] = [lambda: x2.extend(self.xdma(t, 2, None, R(53)))]
        self.g1p(t, 0, ex)
        self.glu(t, 0, tpre=False)
        self.barrier(t, "B1")
        self.g1(t, 1, extra={s: [lambda s=s: self.w2load(t, s)] for s in range(16)})
        self.stamp(t, "g1(1)")
        self.glu(t, 1)
        self.w2fix(t)
        self.conv_silu(t, 0)
        self.barrier(t, "B2", *x2)
        x3 = self.xdma(t, 3, None, R(53))
        x4 = self.xdma(t, 4, None, R(53))
        self.wrapaddr(t)
        self.g1(t, 2)
        self.barrier(t, "B3", *x3)
        for n in range(1, 4):
            self.glu(t, n+1)
            self.conv_silu(t, n)
            self.stamp(t, f"Y{n}")
            self.g2(t, n-1)
            self.out(t, n-1, n % 2)
            if n < 3: self.g1(t, n+2)
            self.barrier(t, f"B{n+3}", *x4)
        self.g2(t, 3)
        self.out(t, 3, 0)
        self.finish(t)

    def path_F(self, t):
        t("s_setprio 3")
        x1 = self.xdma(t, 1, None, R(9))
        t("s_setprio 0")
        self.addr_rest(t)
        self.tbuild(t)
        self.barrier(t, "B0")
        for s in range(8): self.w1load(t, s)
        self.barrier(t, "B1", *x1)
        ex = {s: [lambda s=s: self.w1load(t, s+8)] for s in range(8)}
        for s in range(8): ex[8+s] = [lambda s=s: (self.w2load(t, 2*s), self.w2load(t, 2*s+1))]
        self.g1p(t, 0, ex)
        self.stamp(t, "g1p")
        self.glu(t, 0, tpre=False)
        self.g1(t, 1)
        self.barrier(t, "B2")
        self.glu(t, 1)
        self.w2fix(t)
        self.conv_silu(t, 0)
        self.wrapaddr(t)
        self.barrier(t, "B3")
        for n in range(1, 4):
            self.g2(t, n-1)
            self.out(t, n-1, (n-1) % 2)
            self.g1(t, n+1)
            self.stamp(t, f"X{n}")
            self.glu(t, n+1)
            self.conv_silu(t, n)
            self.barrier(t, f"B{n+3}")
        self.g2(t, 3)
        self.out(t, 3, 0)
        self.finish(t)

    def build(self):
        t = Trace()
        self.prologue(t)
        t(f"s_cmp_ge_u32 {sWAVE}, 4")
        t("s_cbranch_scc1 L_F")
        tl = Trace(t); tl.nstamp = t.nstamp; tl.stamp_names = list(t.stamp_names)
        self.path_L(tl)
        tf = Trace(t); tf.nstamp = t.nstamp; tf.stamp_names = list(t.stamp_names)
        self.path_F(tf)
        self.names = {'L': tl.stamp_names, 'F': tf.stamp_names}
        head = open('cdna_kernels/' + NAME + '.s.ref').read().split('\n')
        hdr = [x for x in head if x.startswith(';') and '@launch' not in x]
        s = '\n'.join(hdr) + f"\n; @launch grid=(250,1,1) block=(512,1,1) lds={LDS}\n"
        s += f""".amdgcn_target "amdgcn-amd-amdhsa--gfx950"
.text
.globl {NAME}_kernel
.p2align 8
.type {NAME}_kernel,@function
{NAME}_kernel:
"""
        s += '\n'.join(t.out) + '\n' + '\n'.join(tl.out) + '\nL_F:\n' + '\n'.join(tf.out) + '\nL_end:\n    s_endpgm\n'
        s += f""".section .rodata,"a"
.p2align 6
.amdhsa_kernel {NAME}_kernel
  .amdhsa_next_free_vgpr 256
  .amdhsa_next_free_sgpr 102
  .amdhsa_accum_offset 256
  .amdhsa_group_segment_fixed_size 0
  .amdhsa_kernarg_size 56
  .amdhsa_user_sgpr_count 2
  .amdhsa_user_sgpr_kernarg_segment_ptr 1
  .amdhsa_system_sgpr_workgroup_id_x 1
.end_amdhsa_kernel
"""
        return s

if __name__ == "__main__":
    import json
    g = Gen(stamps=False); open('cdna_kernels/' + NAME + '.s', 'w').write(g.build())
    g = Gen(stamps=True); open('diag.s', 'w').write(g.build())
    json.dump(g.names, open('diag.json', 'w'))
```

```python
import re

def regs_of(tok):
    tok = tok.strip().lstrip('-')
    m = re.fullmatch(r'([vs])\[(\d+):(\d+)\]', tok)
    if m: return {(m.group(1), i) for i in range(int(m.group(2)), int(m.group(3)) + 1)}
    m = re.fullmatch(r'([vs])(\d+)', tok)
    if m: return {(m.group(1), int(m.group(2)))}
    if tok == 'vcc': return {('s', 'vcc')}
    if tok == 'm0': return {('s', 'm0')}
    if tok == 'exec': return {('s', 'exec')}
    return set()

TRANS = ('v_exp_', 'v_rcp_', 'v_log_', 'v_rsq_', 'v_sqrt_')

class Ins:
    def __init__(self, text, tag=None):
        self.text = text
        self.tag = tag
        t = text.split(';')[0].strip()
        self.is_label = t.endswith(':') or t.startswith('.') or t == ''
        self.mn = t.split()[0] if t and not self.is_label else ''
        rest = t[len(self.mn):].strip()
        ops = [o.strip() for o in rest.split(',')] if rest else []
        if ops:
            ops[-1:] = ops[-1].split()
        self.ops = ops
        mn = self.mn
        self.defs, self.uses = set(), set()
        self.kind = 'other'
        self.passes = 0
        if mn.startswith('v_mfma'):
            self.kind = 'mfma'
            self.passes = 8 if '32x32x16' in mn else (4 if '16x16x32' in mn else 2)
            self.defs = regs_of(ops[0]); self.srcA = regs_of(ops[1]); self.srcB = regs_of(ops[2]); self.srcC = regs_of(ops[3])
            self.uses = self.srcA | self.srcB | self.srcC
        elif mn.startswith('v_'):
            self.kind = 'valu'
            self.defs = regs_of(ops[0])
            for o in ops[1:]: self.uses |= regs_of(o)
            if mn.startswith(('v_fmac', 'v_permlane')): self.uses |= self.defs
            if mn.startswith('v_permlane'): self.defs |= regs_of(ops[1])
        elif mn.startswith('ds_read'):
            self.kind = 'ds'
            self.defs = regs_of(ops[0]); self.uses = regs_of(ops[1])
        elif mn.startswith('ds_'):
            self.kind = 'ds'
            for o in ops: self.uses |= regs_of(o)
        elif mn.startswith(('buffer_load', 'global_load')):
            self.kind = 'vm'
            if 'lds' in ops:
                for o in ops: self.uses |= regs_of(o)
                self.uses |= {('s', 'm0')}
            else:
                self.defs = regs_of(ops[0])
                for o in ops[1:]: self.uses |= regs_of(o)
        elif mn.startswith(('buffer_', 'global_')):
            self.kind = 'vm'
            for o in ops: self.uses |= regs_of(o)
            self.wide_store = 'x4' in mn or 'x3' in mn
            self.data = regs_of(ops[0])
        elif mn.startswith('s_'):
            self.kind = 'salu'
            if mn.startswith(('s_cmp', 's_waitcnt', 's_barrier', 's_nop', 's_branch', 's_cbranch', 's_setprio', 's_endpgm', 's_setpc', 's_sleep')):
                for o in ops: self.uses |= regs_of(o)
            else:
                if ops: self.defs = regs_of(ops[0])
                for o in ops[1:]: self.uses |= regs_of(o)
        self.trans = mn.startswith(TRANS)

class Trace:
    def __init__(self, parent=None):
        self.out = []
        if parent is None:
            self.hist = []
            self.state = 0
            self.ptime = 0
            self.mfree = 0
            self.lds = []
            self.vm = []
        else:
            self.hist = list(parent.hist); self.state = parent.state
            self.ptime = parent.ptime; self.mfree = parent.mfree
            self.lds = list(parent.lds); self.vm = list(parent.vm)
        self.nnop = 0
    def raw(self, text):
        self.out.append(text)
    def _push(self, ins):
        self.out.append('    ' + ins.text)
        n = 1
        if ins.mn == 's_nop': n = int(ins.ops[0]) + 1
        if ins.kind == 'mfma':
            self.ptime = max(self.ptime, self.mfree)
            self.mfree = self.ptime + ins.passes
        ins.ptime = self.ptime
        self.ptime += n
        self.hist.append((ins, self.state))
        self.state += n
        if len(self.hist) > 40: self.hist = self.hist[-40:]
    def _wait(self, lg=None, vm=None):
        parts = []
        if vm is not None:
            vm = min(vm, 62); parts.append(f'vmcnt({vm})'); self.vm = self.vm[len(self.vm) - vm:] if vm else []
        if lg is not None:
            lg = min(lg, 14); parts.append(f'lgkmcnt({lg})'); self.lds = self.lds[len(self.lds) - lg:] if lg else []
        self._push(Ins('s_waitcnt ' + ' '.join(parts)))
    def wait_op(self, *handles):
        lg = vm = None
        for h in handles:
            if h in self.lds:
                n = len(self.lds) - 1 - self.lds.index(h); lg = n if lg is None else min(lg, n)
            if h in self.vm:
                n = len(self.vm) - 1 - self.vm.index(h); vm = n if vm is None else min(vm, n)
        if lg is not None or vm is not None: self._wait(lg, vm)
    def wait_lds(self):
        if self.lds: self._wait(lg=0)
    def wait_vm(self):
        if self.vm: self._wait(vm=0)
    def __call__(self, text):
        ins = Ins(text)
        if ins.is_label:
            self.out.append(text); return ins
        touched = ins.defs | ins.uses
        need = [h for h in self.lds + self.vm if h.defs & touched]
        if ins.kind == 'ds':
            need = [h for h in need if not (h.kind == 'ds' and not (h.defs & ins.uses))]
        if need: self.wait_op(*need)
        req = 0
        for p, st in self.hist:
            have = self.state - st - (int(p.ops[0]) + 1 if p.mn == 's_nop' else 1)
            if p.kind == 'mfma' and ins.kind in ('valu', 'mfma') and p.passes == 8:
                now = max(self.ptime, self.mfree) if ins.kind == 'mfma' else self.ptime
                have = max(have, now - p.ptime - 1)
            w = self.hazard(p, ins)
            if w > have: req = max(req, w - have)
        while req > 0:
            k = min(req, 16)
            self._push(Ins(f's_nop {k-1}')); self.nnop += 1
            req -= k
        self._push(ins)
        if ins.kind == 'ds': self.lds.append(ins)
        if ins.kind == 'vm': self.vm.append(ins)
        if ins.mn == 's_waitcnt':
            m = re.search(r'lgkmcnt\((\d+)\)', text)
            if m:
                n = int(m.group(1)); self.lds = self.lds[len(self.lds) - n:] if n and len(self.lds) > n else ([] if n == 0 else self.lds)
            m = re.search(r'vmcnt\((\d+)\)', text)
            if m:
                n = int(m.group(1)); self.vm = self.vm[len(self.vm) - n:] if n and len(self.vm) > n else ([] if n == 0 else self.vm)
        return ins
    @staticmethod
    def hazard(p, c):
        w = 0
        vd = {r for r in p.defs if r[0] == 'v'}
        sd = {r for r in p.defs if r[0] == 's'}
        if p.kind == 'valu':
            if c.kind == 'mfma' and vd & c.uses: w = max(w, 2)
            if p.trans and c.kind in ('valu', 'ds', 'vm') and vd & c.uses: w = max(w, 1)
            if c.mn.startswith(('v_readfirstlane', 'v_readlane')) and vd & c.uses: w = max(w, 1)
            if c.mn.startswith('v_permlane') and vd & c.uses: w = max(w, 2)
            if 'dpp' in c.text and vd & c.uses: w = max(w, 2)
            if sd & c.uses:
                if c.kind == 'vm': w = max(w, 5)
                elif c.kind in ('valu', 'mfma'): w = max(w, 2)
                elif c.kind == 'salu': w = max(w, 1)
            if ('s', 'exec') in sd and c.kind == 'mfma': w = max(w, 4)
        if p.kind == 'mfma':
            big = {2: 5, 4: 8, 8: 12}[p.passes]
            if c.kind == 'mfma':
                if vd & (c.srcA | c.srcB): w = max(w, big)
                if vd & c.srcC:
                    if vd == c.srcC and p.passes == c.passes: w = max(w, 2 if p.passes == 2 else 0)
                    else: w = max(w, {2: 4, 4: 6, 8: 10}[p.passes])
                elif vd & c.defs:
                    w = max(w, big)
            elif c.kind in ('valu', 'ds', 'vm'):
                if vd & (c.uses | c.defs): w = max(w, big)
                if c.kind == 'valu' and p.srcC & c.defs: w = max(w, {2: 1, 4: 3, 8: 7}[p.passes])
        if p.kind == 'vm' and getattr(p, 'wide_store', False) and p.data & c.defs: w = max(w, 2)
        if p.kind == 'salu' and ('s', 'm0') in sd and c.kind == 'vm' and ('s', 'm0') in c.uses: w = max(w, 1)
        return w
```

```python
import sys, struct, json
from asmlib import Trace
NAME = "standalone__conformer_conv_module__speech"
def f2u(x): return struct.unpack('<I', struct.pack('<f', x))[0]
LOG2E = 1.4426950408889634; LN2 = 0.6931471805599453

XB, XSZ = 0, 16896
SB = 50688
GB, GSZ = 83456, 4608
TB, TSZ = 120320, 4864
LDS = 159744
vXA, vTR, vGW, vGR, vT, vSW, vOG, vTMP = range(8)
R0 = 8
def R(i, n=1): return f"v{R0+i}" if n == 1 else f"v[{R0+i}:{R0+i+n-1}]"
W1 = 64; W2 = 192
def V(i, n=1): return f"v{i}" if n == 1 else f"v[{i}:{i+n-1}]"
def W1t(s, j): return W1 + 8*s + 4*j
def W2f(s): return W2 + 4*s
sX, sW1, sDW, sW2, sO, sWS, sDBG = "s[4:7]", "s[8:11]", "s[12:15]", "s[16:19]", "s[20:23]", "s[24:27]", "s[28:31]"
sWAVE, sXROW, sT0, sT1 = "s32", "s33", "s34", "s35"
sK, sK2, sPAR, sSREG, sGREG, sXQ, sCB = "s36", "s37", "s38", "s39", "s40", "s41", "s3"
sM1, sM2, sM3 = "s[42:43]", "s[44:45]", "s[46:47]"
STAMP0 = 48
DATA = [16, 20, 4, 24, 28]
def dpair(d): return DATA[d//2] + 2*(d % 2)

class Gen:
    def __init__(self, stamps=False, opts=None):
        self.stamps = stamps; self.o = dict(prioX=0, prioY=1, prioCV=2, bar_step=14, pf=1); self.o.update(opts or {})
        self.names = {}
    def stamp(self, t, name):
        if self.o.get('probe') == name: t("s_memrealtime s[96:97]")
        if not self.stamps: return
        if name in self.o.get('nostamp', ()): return
        if 'only' in self.o and name not in self.o['only']: return
        if 'only' not in self.o and (name[0] == 'k' and name[1:].isdigit() or name in ('xiss', 'wiss')): return
        k = t.nstamp; t.nstamp += 1
        assert STAMP0 + 2*k + 1 <= 97, name
        t.stamp_names.append(name)
        t(f"s_memtime s[{STAMP0+2*k}:{STAMP0+2*k+1}]")

    def prologue(self, t):
        t.nstamp = 0; t.stamp_names = []
        self.stamp(t, "start")
        if self.stamps: t("s_memrealtime s[98:99]")
        t("s_cmp_ge_u32 s2, 250")
        t("s_cbranch_scc1 L_end")
        t("s_load_dwordx2 s[4:5], s[0:1], 0")
        t("s_load_dwordx2 s[8:9], s[0:1], 8")
        t("s_load_dwordx2 s[12:13], s[0:1], 16")
        t("s_load_dwordx2 s[16:17], s[0:1], 24")
        t("s_load_dwordx2 s[20:21], s[0:1], 32")
        t("s_load_dwordx2 s[24:25], s[0:1], 48")
        l, h, a, b, c, d = R(0), R(1), R(2), R(3), R(4), R(5)
        t(f"v_lshrrev_b32 {a}, 6, v0")
        t(f"v_and_b32 {l}, 63, v0")
        t(f"v_readfirstlane_b32 {sWAVE}, {a}")
        if self.o['pf']:
            t("s_getpc_b64 s[28:29]")
            t("s_and_b32 s28, s28, 0xffffff00")
            t("s_mov_b32 s30, CODE_BYTES"); t("s_mov_b32 s31, 0x20000")
            t("s_bfe_u32 s33, s2, 0x10003")
            t("s_lshl_b32 s33, s33, 14")
            t(f"v_lshrrev_b32 {b}, 1, v0")
            t(f"v_lshl_add_u32 {b}, {b}, 6, s33")
            t(f"buffer_load_dword {V(255)}, {b}, s[28:31], 0 offen")
        t(f"v_lshrrev_b32 {h}, 5, {l}")
        t(f"s_bcnt1_i32_b32 {sPAR}, s2")
        t(f"s_and_b32 {sPAR}, {sPAR}, 1")
        t(f"s_lshl_b32 {sT0}, {sPAR}, 2")
        t(f"s_xor_b32 {sCB}, {sWAVE}, {sT0}")
        t(f"s_lshl_b32 {sCB}, {sCB}, 6")
        t(f"s_lshl_b32 {sPAR}, {sPAR}, 16")
        t(f"v_xor_b32 {a}, {l}, {h}")
        t(f"v_lshlrev_b32 v{vTMP}, 4, {a}")
        t(f"v_and_b32 {c}, 3, {l}")
        t(f"v_lshlrev_b32 {d}, 4, {c}")
        t(f"v_add_u32 {R(6)}, {sCB}, {d}")
        t(f"v_lshrrev_b32 {b}, 2, {l}")
        t(f"v_lshl_add_u32 {R(54)}, {b}, 10, {R(6)}")
        t("s_cmp_ge_u32 s2, 125")
        t(f"s_cselect_b32 {sT0}, 8192000, 0")
        t(f"s_cselect_b32 {sT1}, 125, 0")
        t(f"s_sub_u32 {sT1}, s2, {sT1}")
        t(f"s_lshl_b32 {sT1}, {sT1}, 16")
        t(f"s_and_b32 {sXQ}, {sWAVE}, 3")
        t(f"s_lshl_b32 {sXROW}, {sXQ}, 12")
        t(f"s_add_u32 {sXROW}, {sXROW}, {sT1}")
        t(f"s_sub_u32 {sXROW}, {sXROW}, 8192")
        t(f"s_mul_i32 {sXQ}, {sXQ}, {4*1056}")
        t(f"s_lshl_b32 {sSREG}, {sWAVE}, 11"); t(f"s_add_u32 {sSREG}, {sSREG}, {SB}")
        t(f"s_mul_i32 {sGREG}, {sWAVE}, {GSZ}"); t(f"s_add_u32 {sGREG}, {sGREG}, {GB}")
        t("s_mov_b32 s6, 8192000"); t("s_mov_b32 s7, 0x20000")
        t("s_mov_b32 s10, 262144"); t("s_mov_b32 s11, 0x20000")
        t("s_mov_b32 s14, 15872"); t("s_mov_b32 s15, 0x20000")
        t("s_mov_b32 s18, 131072"); t("s_mov_b32 s19, 0x20000")
        t("s_mov_b32 s22, 65536"); t("s_mov_b32 s23, 0x20000")
        t("s_mov_b32 s26, 0x10000000"); t("s_mov_b32 s27, 0x20000")
        t(f"s_add_u32 {sT1}, {sT0}, {sT1}")
        t("s_waitcnt lgkmcnt(0)")
        self.stamp(t, "karg")
        t(f"s_add_u32 s4, s4, {sT0}"); t("s_addc_u32 s5, s5, 0")
        t(f"s_add_u32 s20, s20, {sT1}"); t("s_addc_u32 s21, s21, 0")

    def addr_rest(self, t):
        l, h, a, b, c, d = R(0), R(1), R(2), R(3), R(4), R(5)
        e, f = R(9), R(10)
        t(f"s_mov_b32 {sK}, {hex(f2u(-LN2))}")
        t(f"s_mov_b32 {sK2}, {hex(f2u(-LOG2E))}")
        for m, v in ((42, 0x88888888), (44, 0xcccccccc), (46, 0xeeeeeeee)):
            t(f"s_mov_b32 s{m}, {hex(v)}"); t(f"s_mov_b32 s{m+1}, {hex(v)}")
        t(f"v_bfe_u32 {a}, {l}, 2, 3")
        t(f"v_bcnt_u32_b32 {a}, {a}, 0")
        t(f"v_and_b32 {a}, 1, {a}")
        t(f"v_lshl_or_b32 {a}, {h}, 1, {a}")
        t(f"v_bfe_u32 {e}, {l}, 3, 2")
        t(f"v_lshl_or_b32 {a}, {e}, 2, {a}")
        t(f"v_lshl_add_u32 v{vOG}, {a}, 9, {R(6)}")
        t(f"s_sub_u32 {sT0}, {sGREG}, 64")
        t(f"v_mul_u32_u24 {e}, 144, {a}")
        t(f"v_add3_u32 v{vGR}, {e}, {d}, {sT0}")
        t(f"v_and_b32 {e}, 31, {l}")
        t(f"v_mul_u32_u24 {e}, 144, {e}")
        t(f"v_lshlrev_b32 {f}, 4, {h}")
        t(f"v_add3_u32 v{vGW}, {e}, {f}, {sGREG}")
        t(f"s_mul_i32 {sT1}, {sWAVE}, {TSZ}")
        t(f"s_add_u32 {sT1}, {sT1}, {TB + 19*4}")
        t(f"v_and_b32 {e}, 1, {c}")
        t(f"v_mul_u32_u24 {e}, 72, {e}")
        t(f"v_lshrrev_b32 {f}, 1, {c}")
        t(f"v_lshl_add_u32 {e}, {f}, 2, {e}")
        t(f"v_mul_u32_u24 {f}, 304, {b}")
        t(f"v_sub_u32 {f}, {f}, {e}")
        t(f"v_add_u32 v{vT}, {sT1}, {f}")
        t(f"v_lshl_add_u32 v{vSW}, {l}, 4, {sSREG}")
        t(f"v_bfe_u32 {e}, {l}, 2, 2")
        t(f"v_lshlrev_b32 {e}, 6, {e}")
        t(f"v_lshl_or_b32 {e}, {h}, 9, {e}")
        t(f"v_bfe_u32 {f}, {l}, 4, 1")
        t(f"v_lshl_or_b32 {e}, {f}, 5, {e}")
        t(f"v_lshl_or_b32 {f}, {c}, 3, {e}")
        t(f"v_add_u32 v{vTR}, {SB}, {f}")
        t(f"v_add_u32 {R(51)}, {sSREG}, {f}")
        t(f"v_add_u32 {R(52)}, {sGREG}, {f}")
        t(f"v_add_u32 {R(53)}, {sXQ}, {f}")
        t(f"v_and_b32 {e}, 0x13, {l}")
        t(f"v_bfe_u32 {f}, {l}, 2, 1")
        t(f"v_lshl_or_b32 {e}, {f}, 3, {e}")
        t(f"v_bfe_u32 {f}, {l}, 3, 1")
        t(f"v_lshl_or_b32 {e}, {f}, 2, {e}")
        t(f"v_lshrrev_b32 {f}, 1, {e}")
        t(f"v_mul_u32_u24 {f}, 1056, {f}")
        t(f"v_and_b32 {e}, 1, {e}")
        t(f"v_lshl_add_u32 {f}, {e}, 9, {f}")
        t(f"v_xor_b32 {e}, {e}, {h}")
        t(f"v_lshl_add_u32 v{vXA}, {e}, 4, {f}")

    def xlane(self, t, dst, tmp):
        t(f"v_subrev_u32 {dst}, {sSREG}, v{vSW}")
        t(f"v_lshrrev_b32 {tmp}, 5, {dst}")
        t(f"v_and_b32 {tmp}, 16, {tmp}")
        t(f"v_xor_b32 {dst}, {dst}, {tmp}")
    def xdma1(self, t, c, q, lane, tmp):
        t(f"s_add_u32 {sT1}, {sXROW}, {c*16384 + q*1024}")
        t(f"s_add_u32 m0, {sXQ}, {XB + (c%3)*XSZ + q*1056}")
        t(f"v_add_u32 {tmp}, {sT1}, {lane}")
        return t(f"buffer_load_dwordx4 {tmp}, {sX}, 0 offen nt lds")
    def xdma(self, t, c, lane, tmp):
        return [self.xdma1(t, c, q, lane, tmp) for q in range(4)]

    def slot(self, kind, i, regs):
        if kind == 's': return (sSREG, (i // 2)*16384 + (i % 2)*1024, regs['s'])
        if kind == 'g': return (sGREG, i*1024, regs['g'])
        if kind[0] == 'x': return (sXQ, XB + int(kind[1])*XSZ + i*1024, regs['x'])
    def w1dma(self, t, s, pair):
        hs = []
        t(f"s_mov_b32 {sT0}, {s*16384}")
        for j in range(2):
            base, off, _ = pair[j]
            t(f"s_add_u32 m0, {base}, {off - 512*j}")
            hs.append(t(f"buffer_load_dwordx4 {R(54)}, {sW1}, {sT0} offen offset:{512*j} lds"))
        return hs
    def w2dma(self, t, s, sl):
        base, off, _ = sl
        t(f"s_add_u32 m0, {base}, {off}")
        t(f"s_xor_b32 {sT0}, {sPAR}, {s*8192}")
        return t(f"buffer_load_dwordx4 v{vOG}, {sW2}, {sT0} offen lds")
    def trtile(self, t, dst, sl):
        _, off, a = sl
        return [t(f"ds_read_b64_tr_b16 {V(dst+2*u,2)}, {a} offset:{off+256*u}") for u in range(2)]
    def w2addr(self, t, dst, base, tmp):
        t(f"v_lshrrev_b32 {tmp}, 1, v{vTR}")
        t(f"v_xor_b32 {tmp}, {tmp}, v{vTR}")
        t(f"v_bfe_u32 {tmp}, {tmp}, 3, 1")
        t(f"v_mul_u32_u24 {tmp}, 24, {tmp}")
        t(f"v_xor_b32 {tmp}, {tmp}, v{vTR}")
        for d, b in zip(dst, base):
            t(f"s_sub_u32 {sT0}, {b}, {SB}")
            t(f"v_add_u32 {d}, {sT0}, {tmp}")

    def dwdma(self, t):
        hs = []
        t(f"v_lshl_add_u32 {R(7)}, {R(3)}, 9, {R(6)}")
        for k in range(2):
            for v in range(2):
                t(f"v_xor_b32 {R(8)}, {(256 if k == 0 else 0) + 8192*v}, {R(7)}")
                t(f"s_add_u32 m0, {sGREG}, {k*2048 + v*1024}")
                hs.append(t(f"buffer_load_dwordx4 {R(8)}, {sDW}, 0 offen lds"))
        return hs
    def tbuild(self, t, hs):
        l, h = R(0), R(1)
        z = R(12, 4)
        PO = 4*TSZ
        for i in range(4): t(f"v_mov_b32 {R(12+i)}, 0")
        t(f"s_mul_i32 {sT1}, {sWAVE}, {TSZ}")
        t(f"s_add_u32 {sT1}, {sT1}, {TB - PO}")
        t(f"v_lshl_add_u32 {R(16)}, {l}, 4, {sT1}")
        for k in range(2):
            for off in (0, 1024, 2048, 3072, TSZ-1024): t(f"ds_write_b128 {R(16)}, {z} offset:{k*PO + off}")
        e, f, g = R(18), R(19), R(20)
        t(f"v_bfe_u32 {e}, {l}, 2, 2")
        t(f"v_and_b32 {f}, 13, {l}")
        t(f"v_bcnt_u32_b32 {f}, {f}, 0")
        t(f"v_and_b32 {f}, 1, {f}")
        t(f"v_lshl_or_b32 {f}, {e}, 1, {f}")
        t(f"v_bfe_u32 {e}, {l}, 1, 1")
        t(f"v_lshl_or_b32 {f}, {e}, 3, {f}")
        t(f"v_mul_u32_u24 {f}, 304, {f}")
        t(f"v_bfe_u32 {e}, {l}, 4, 1")
        t(f"v_mul_u32_u24 {e}, 144, {e}")
        t(f"v_lshl_add_u32 {g}, {h}, 4, {sT1}")
        t(f"v_add3_u32 {g}, {e}, {f}, {g}")
        t(f"v_add_u32 {R(21)}, {PO}, {g}")
        t(f"v_subrev_u32 {R(22)}, 64, {R(52)}")
        t(f"v_subrev_u32 {R(23)}, {SB + 64}, v{vTR}")
        t(f"v_and_b32 {R(23)}, 2047, {R(23)}")
        t(f"v_add_u32 {R(23)}, {sGREG}, {R(23)}")
        return lambda: self.tbuild2(t, hs)
    def tbuild2(self, t, hs):
        t.wait_op(*hs)
        last = None
        for k in range(2):
            B = W2 + 16*k
            for v in range(2):
                for u in range(2):
                    t(f"ds_read_b64_tr_b16 {V(B+4*v+2*u,2)}, {R(52)} offset:{k*2048 + v*1024 + u*256}")
            for v in range(2):
                for u in range(2):
                    a = R(23) if (v, u) == (0, 0) else R(22)
                    last = t(f"ds_read_b64_tr_b16 {V(B+8+4*v+2*u,2)}, {a} offset:{k*2048 + v*1024 + u*256}")
        for k in range(2):
            B = W2 + 16*k; g = R(20+k)
            for v in range(2):
                t(f"ds_write2_b64 {g}, {V(B+4*v,2)}, {V(B+2+4*v,2)} offset0:{1+4*v} offset1:{2+4*v}")
            for v in range(2):
                for u in range(2):
                    t(f"ds_write2_b32 {g}, {V(B+8+4*v+2*u)}, {V(B+9+4*v+2*u)} offset0:{19+8*v+2*u} offset1:{20+8*v+2*u}")

    def xread(self, t, c, s):
        return t(f"ds_read_b128 {R(32+4*(s%4),4)}, v{vXA} offset:{XB + (c%3)*XSZ + 32*s}")
    def mm1(self, t, s, j):
        acc = R(16*j, 16)
        t(f"v_mfma_f32_32x32x16_bf16 {acc}, {R(32+4*(s%4),4)}, {V(W1t(s,j),4)}, {acc if s else 0}")

    def g1p(self, t, c, pairs, pend, refill):
        def rd(s):
            t.wait_op(*pend[s])
            self.xread(t, c, s)
            self.trtile(t, W1t(s,1), pairs[s][1]); self.trtile(t, W1t(s,0), pairs[s][0])
        LAG = self.o.get('lag', 2)
        for s in range(LAG): rd(s)
        for s in range(16):
            self.mm1(t, s, 1); self.mm1(t, s, 0)
            self.stamp(t, f"k{s}")
            refill(s)
            if s + LAG < 16: rd(s + LAG)

    def g1(self, t, c, extra={}, bar=None, start=0):
        for s in range(start, 16):
            if bar and s == self.o['bar_step']: bar()
            self.mm1(t, s, 1); self.mm1(t, s, 0)
            if s + 4 < 16: self.xread(t, c, s+4)
            for f in extra.get(s, []): f()

    def tread(self, t, gi, s):
        t(f"ds_read2_b32 {R(32+2*s,2)}, v{vT} offset0:{36*gi+2*s} offset1:{36*gi+2*s+1}")
    def dread(self, t, o, gi, e):
        if o % 2 == 0: a, off = f"v{vGR}", 64 + 16*e
        elif e == 0: a, off = f"v{vGR}", 128
        elif e == 4: a, off = f"v{vGR}", 64
        else: a, off = [None, R(54), R(55), f"v{vTMP}"][e], 16*e
        t(f"ds_read_b128 {R(DATA[e],4)}, {a} offset:{gi*2304+off}")
    def wrapaddr(self, t):
        t(f"v_add_u32 {R(53)}, 128, v{vGR}")
        for dst, m in ((R(54), sM1), (R(55), sM2), (f"v{vTMP}", sM3)):
            t(f"v_cndmask_b32 {dst}, {R(53)}, v{vGR}, {m}")
    def glu_half(self, t, c, half, extra=()):
        extra = list(extra)
        a = [8*half + i for i in range(8)]; b = [16 + x for x in a]
        for i in range(8): t(f"v_mul_f32 {R(b[i])}, {sK2}, {R(b[i])}")
        for i in range(10):
            if i < 8: t(f"v_exp_f32 {R(b[i])}, {R(b[i])}")
            if i >= 2: t(f"v_fma_f32 {R(b[i-2])}, {R(b[i-2])}, {sK}, {sK}")
            if extra: extra.pop(0)()
        for i in range(12):
            if i < 8: t(f"v_rcp_f32 {R(b[i])}, {R(b[i])}")
            if 2 <= i < 10: t(f"v_mul_f32 {R(b[i-2])}, {R(a[i-2])}, {R(b[i-2])}")
            if i >= 5 and i % 2 == 1:
                k = (i-5)//2
                t(f"v_cvt_pk_bf16_f32 {R(a[0]+k)}, {R(b[2*k])}, {R(b[2*k+1])}")
            if extra: extra.pop(0)()
        t(f"ds_write_b128 v{vGW}, {R(a[0],4)} offset:{(c%2)*64 + 32*half}")
        for f in extra: f()
    def si_tail(self, t, y, tmp, pk, exp_done, extra=()):
        extra = list(extra)
        for i in range(10):
            if exp_done <= i < 8: t(f"v_exp_f32 {R(tmp[i])}, {R(y[i])}")
            if i >= 2: t(f"v_fma_f32 {R(tmp[i-2])}, {R(tmp[i-2])}, {sK2}, {sK2}")
        for i in range(12):
            if i < 8: t(f"v_rcp_f32 {R(tmp[i])}, {R(tmp[i])}")
            if 2 <= i < 10: t(f"v_mul_f32 {R(tmp[i-2])}, {R(y[i-2])}, {R(tmp[i-2])}")
            if i >= 5 and i % 2 == 1:
                k = (i-5)//2
                t(f"v_cvt_pk_bf16_f32 {R(pk+k)}, {R(tmp[2*k])}, {R(tmp[2*k+1])}")
            if extra: extra.pop(0)()
        for f in extra: f()
    def Y(self, t, c, o, pre=(), ex0=(), ex1=()):
        t(f"s_setprio {self.o['prioY']}")
        for s in range(9): self.tread(t, 0, s)
        self.glu_half(t, c, 0, ex0)
        if o % 2: self.wrapaddr(t)
        for e in range(3): self.dread(t, o, 0, e)
        self.glu_half(t, c, 1, ex1)
        for e in (3, 4): self.dread(t, o, 0, e)
        self.stamp(t, f"glu{c}")
        t(f"s_setprio {self.o['prioCV']}")
        y0 = [0,1,2,3,12,13,14,15]; y1 = [8,9,10,11,50,51,52,53]
        t0 = list(range(16, 24)); t1 = list(range(24, 32))
        for gi in range(2):
            acc = [R(0,4), R(12,4)] if gi == 0 else [R(8,4), R(50,4)]
            ne = 0
            for s in range(9):
                for z in range(2):
                    t(f"v_mfma_f32_4x4x4_16b_bf16 {acc[z]}, {R(32+2*s,2)}, {R(dpair(z+s),2)}, {acc[z] if s else 0}")
                if gi == 0:
                    self.tread(t, 1, s)
                    if s % 2 == 1: self.dread(t, o, 1, s//2)
                elif s >= 1 and self.o.get('cvexp', 1):
                    t(f"v_exp_f32 {R(t0[ne])}, {R(y0[ne])}"); ne += 1
            if gi == 0: self.dread(t, o, 1, 4)
        t(f"s_setprio {self.o['prioY']}")
        self.stamp(t, f"cv{o}")
        self.si_tail(t, y0, t0, 4, ne)
        t(f"ds_write_b128 v{vSW}, {R(4,4)} offset:{(o%2)*16384}")
        self.si_tail(t, y1, t1, 0, 0, pre)
        t(f"ds_write_b128 v{vSW}, {R(0,4)} offset:{(o%2)*16384 + 1024}")
        t(f"s_setprio {self.o['prioX']}")

    def sread(self, t, o, s):
        for u in range(2):
            t(f"ds_read_b64_tr_b16 {R(32+4*(s%4)+2*u,2)}, v{vTR} offset:{(o%2)*16384 + s*1024 + u*256}")
    def pre_g2(self, t, o): return [lambda s=s: self.sread(t, o, s) for s in range(4)]
    def pre_g1(self, t, c): return [lambda s=s: self.xread(t, c, s) for s in range(4)]
    def g2(self, t, o, nxt=None, acc=16):
        acc = R(acc, 16)
        for s in range(16):
            t(f"v_mfma_f32_32x32x16_bf16 {acc}, {V(W2f(s),4)}, {R(32+4*(s%4),4)}, {acc if s else 0}")
            if s + 4 < 16: self.sread(t, o, s+4)
            elif nxt: nxt[s-12]()
    def out_cvt(self, t, j, half, acc=16):
        for k in range(4): t(f"v_cvt_pk_bf16_f32 {R(48+4*j+k)}, {R(acc+8*j+2*k)}, {R(acc+8*j+2*k+1)}")
        t(f"ds_write_b128 v{vGW}, {R(48+4*j,4)} offset:{half*64 + 32*j}")
    def out_rd(self, t, half):
        for j in range(2): t(f"ds_read_b128 {R(48+4*j,4)}, v{vGR} offset:{64 + half*64 + j*2304}")
    def out_st(self, t, o):
        for j in range(2):
            t(f"s_mov_b32 {sT0}, {o*16384 + j*8192}")
            t(f"buffer_store_dwordx4 {R(48+4*j,4)}, v{vOG}, {sO}, {sT0} offen sc1")
    def X(self, t, o, c, half, bar, extra={}):
        self.g2(t, o, self.pre_g1(t, c))
        self.mm1(t, 0, 0); self.mm1(t, 1, 0)
        self.out_cvt(t, 0, half)
        self.mm1(t, 2, 0)
        self.out_cvt(t, 1, half)
        for s in range(3):
            self.mm1(t, s, 1); self.xread(t, c, s+4)
        self.out_rd(t, half)
        ex = dict(extra); ex[6] = list(ex.get(6, [])) + [lambda: self.out_st(t, o)]
        self.g1(t, c, ex, bar, start=3)
    def out_plain(self, t, o, half, acc=16):
        self.out_cvt(t, 0, half, acc); self.out_cvt(t, 1, half, acc)
        self.out_rd(t, half); self.out_st(t, o)

    def barrier(self, t, name, *handles, prio=None):
        t.wait_op(*handles)
        t.wait_lds()
        if prio is not None: t(f"s_setprio {prio}")
        self.stamp(t, name + "<")
        t("s_barrier")
        self.stamp(t, name + ">")

    def finish(self, t):
        if self.o.get('probe') or self.stamps:
            self.stamp(t, "end0")
            t.wait_vm()
            self.stamp(t, "end1")
        if self.o.get('probe'):
            t("s_waitcnt lgkmcnt(0)")
            t("s_add_u32 s96, s96, 6000")
            lab = f"L_spin{t.name}"
            t(lab + ":")
            t("s_memrealtime s[100:101]")
            t("s_waitcnt lgkmcnt(0)")
            t("s_sub_u32 s100, s100, s96")
            t("s_cmp_lt_i32 s100, 0")
            t(f"s_cbranch_scc1 {lab}")
        if self.stamps:
            t("s_memrealtime s[100:101]")
            t("s_waitcnt lgkmcnt(0)")
            t(f"s_lshl_b32 {sT0}, s2, 3"); t(f"s_add_u32 {sT0}, {sT0}, {sWAVE}"); t(f"s_lshl_b32 {sT0}, {sT0}, 7")
            t(f"v_mov_b32 {R(1)}, 0")
            for k, r in [(k, STAMP0+2*k) for k in range(t.nstamp)] + [(30, 98), (31, 100)]:
                t(f"v_mov_b32 {R(0)}, s{r}")
                t(f"buffer_store_dword {R(0)}, {R(1)}, {sWS}, {sT0} offen offset:{4*k}")
        t("s_endpgm")

    def w2stage(self, t, slots):
        pend = {}
        def issue(k): pend[k] = self.w2dma(t, k, slots[k])
        rdh = {}
        def read(k):
            t.wait_op(pend[k]); rdh[k] = self.trtile(t, W2f(k), slots[k])
        def reissue(k, prev):
            t.wait_op(*rdh[prev]); issue(k)
        return issue, read, reissue

    def path_L(self, t):
        regs = {'s': R(51), 'g': R(52), 'x': R(53)}
        PT = self.o['prioCV']
        x0 = self.xdma(t, 0, f"v{vTMP}", R(9))
        ring = [[self.slot(k, 2*i+j, regs) for j in range(2)] for k in ('x2', 's', 'g') for i in range(2)]
        D = len(ring)
        pairs = [ring[s % D] for s in range(16)]
        self.stamp(t, "xiss")
        pend = {s: self.w1dma(t, s, pairs[s]) for s in range(D)}
        self.stamp(t, "wiss")
        self.addr_rest(t)
        self.barrier(t, "B0", *x0)
        x2 = []
        def refill(s):
            if s + D < 16: pend[s+D] = self.w1dma(t, s+D, pairs[s+D])
            if s == 13: x2.extend(self.xdma(t, 2, f"v{vTMP}", R(50)))
        self.g1p(t, 0, pairs, pend, refill)
        self.stamp(t, "g1p")
        self.glu_half(t, 0, 0); self.glu_half(t, 0, 1)
        self.barrier(t, "B1")
        for f in self.pre_g1(t, 1): f()
        self.g1(t, 1)
        self.Y(t, 1, 0)
        self.barrier(t, "B3", *x2)
        for f in self.pre_g1(t, 2): f()
        r2 = {'s': R(50), 'x': R(51)}
        self.w2addr(t, [R(50), R(51)], [sSREG, sXQ], R(52))
        six = [self.slot('x1', i, r2) for i in range(4)] + [self.slot('s', 2+i, r2) for i in range(2)]
        slots = [six[k % 6] for k in range(16)]
        issue, read, reissue = self.w2stage(t, slots)
        ex = {}
        for k in range(6): ex[k//2] = ex.get(k//2, []) + [lambda k=k: issue(k)]
        for k in range(6): ex[8+k//2] = ex.get(8+k//2, []) + [lambda k=k: read(k)]
        for k in range(6): ex[10+k//2] = ex.get(10+k//2, []) + [lambda k=k: reissue(6+k, k)]
        self.g1(t, 2, ex, bar=lambda: self.barrier(t, "B4", prio=PT))
        e0 = [lambda k=k: read(k) for k in range(6, 12)] + [lambda: None]*2 + [lambda k=k: reissue(k, k-6) for k in range(12, 16)]
        x4 = []
        e1 = [lambda: None]*8 + [lambda k=k: read(k) for k in range(12, 16)]
        self.Y(t, 2, 1, self.pre_g2(t, 0), e0, e1)
        self.barrier(t, "B5")
        def ldx4():
            self.xlane(t, f"v{vTMP}", R(48)); x4.extend(self.xdma(t, 4, f"v{vTMP}", R(48)))
        self.X(t, 0, 3, 1, lambda: self.barrier(t, "B6", prio=PT), {9: [ldx4]})
        self.Y(t, 3, 2, self.pre_g2(t, 1))
        self.barrier(t, "B7", *x4)
        self.X(t, 1, 4, 0, lambda: self.barrier(t, "B8", prio=PT))
        self.Y(t, 4, 3, self.pre_g2(t, 2))
        self.barrier(t, "B9")
        self.g2(t, 2, self.pre_g2(t, 3))
        self.out_plain(t, 2, 0)
        self.barrier(t, "B10")
        self.g2(t, 3)
        self.out_plain(t, 3, 0)
        self.finish(t)

    def path_F(self, t):
        regs = {'s': R(51), 'g': R(52), 'x': R(53)}
        PT = self.o['prioCV']
        if self.o['pf']:
            t("s_setprio 3")
            t(f"s_lshr_b32 {sT0}, s2, 3")
            t(f"s_cmp_ge_u32 {sT0}, 20")
            t(f"s_cselect_b32 {sT1}, 20, 0")
            t(f"s_sub_u32 {sT0}, {sT0}, {sT1}")
            t(f"s_lshl_b32 {sT0}, {sT0}, 13")
            t(f"s_add_u32 {sT0}, {sT0}, {96*1024 - 8192}")
            t(f"v_lshrrev_b32 {R(7)}, 1, v0")
            t(f"v_lshlrev_b32 {R(7)}, 6, {R(7)}")
            t(f"buffer_load_dword {V(254)}, {R(7)}, {sW1}, {sT0} offen")
            t("s_setprio 0")
        dwh = self.dwdma(t)
        x1 = self.xdma(t, 1, f"v{vTMP}", R(9))
        ring = [[self.slot(k, 2*i+j, regs) for j in range(2)] for k in ('s', 'g') for i in range(2)]
        D = len(ring)
        pairs = [ring[s % D] for s in range(16)]
        self.stamp(t, "xiss")
        pend = {s: self.w1dma(t, s, pairs[s]) for s in range(2)}
        self.stamp(t, "wiss")
        self.addr_rest(t)
        tb2 = self.tbuild(t, dwh)
        self.barrier(t, "B0")
        tb2()
        for s in range(2, D): pend[s] = self.w1dma(t, s, pairs[s])
        r2 = {'s': R(50)}
        self.w2addr(t, [R(50)], [sSREG], R(49))
        self.barrier(t, "B1", *x1)
        slots = [self.slot('s', k % 4, r2) for k in range(16)]
        issue, read, reissue = self.w2stage(t, slots)
        def refill(s):
            if s + D < 16: pend[s+D] = self.w1dma(t, s+D, pairs[s+D])
            if s == 12: issue(0); issue(1)
            if s == 13: issue(2); issue(3)
        self.g1p(t, 0, pairs, pend, refill)
        self.stamp(t, "g1p")
        self.glu_half(t, 0, 0)
        self.glu_half(t, 0, 1, [lambda: None]*4 + [lambda k=k: read(k) for k in range(4)] + self.pre_g1(t, 1) + [lambda k=k: reissue(4+k, k) for k in range(4)])
        ex = {}
        for g, s0 in ((1, 5), (2, 12)):
            ex[s0] = [lambda k=k: read(k) for k in range(4*g, 4*g+4)]
            ex[s0+1] = [lambda k=k: reissue(k+4, k) for k in range(4*g, 4*g+4)]
        self.g1(t, 1, ex, bar=lambda: self.barrier(t, "B3", prio=PT))
        x3 = []
        e0 = [lambda: x3.extend(self.xdma(t, 3, f"v{vTMP}", R(51)))]
        e1 = [lambda k=k: read(k) for k in range(12, 16)]
        self.Y(t, 1, 0, self.pre_g2(t, 0), e0, e1)
        self.barrier(t, "B4")
        self.X(t, 0, 2, 0, lambda: self.barrier(t, "B5", *x3, prio=PT))
        self.Y(t, 2, 1, self.pre_g2(t, 1))
        self.barrier(t, "B6")
        self.X(t, 1, 3, 1, lambda: self.barrier(t, "B7", prio=PT))
        self.Y(t, 3, 2, self.pre_g2(t, 2))
        self.barrier(t, "B8")
        self.X(t, 2, 4, 0, lambda: self.barrier(t, "B9", prio=PT))
        self.Y(t, 4, 3, self.pre_g2(t, 3))
        self.barrier(t, "B10")
        self.g2(t, 3)
        self.out_plain(t, 3, 0)
        self.finish(t)

    def build(self):
        t = Trace()
        self.prologue(t)
        t(f"s_cmp_ge_u32 {sWAVE}, 4")
        t("s_cbranch_scc1 L_F")
        tl = Trace(t); tl.nstamp = t.nstamp; tl.stamp_names = list(t.stamp_names); tl.name = 'L'
        self.path_L(tl)
        tf = Trace(t); tf.nstamp = t.nstamp; tf.stamp_names = list(t.stamp_names); tf.name = 'F'
        self.path_F(tf)
        self.names = {'L': tl.stamp_names, 'F': tf.stamp_names}
        head = open('cdna_kernels/' + NAME + '.s.ref').read().split('\n')
        hdr = [x for x in head if x.startswith(';') and '@launch' not in x]
        s = '\n'.join(hdr) + f"\n; @launch grid=(250,1,1) block=(512,1,1) lds={LDS}\n"
        s += f""".amdgcn_target "amdgcn-amd-amdhsa--gfx950"
.text
.globl {NAME}_kernel
.p2align 8
.type {NAME}_kernel,@function
{NAME}_kernel:
"""
        s += '\n'.join(t.out) + '\n' + '\n'.join(tl.out) + '\nL_F:\n' + '\n'.join(tf.out) + '\nL_end:\n    s_endpgm\nL_code_end:\n'
        s = s.replace("CODE_BYTES", f"L_code_end-{NAME}_kernel")
        s += f""".section .rodata,"a"
.p2align 6
.amdhsa_kernel {NAME}_kernel
  .amdhsa_next_free_vgpr 256
  .amdhsa_next_free_sgpr 102
  .amdhsa_accum_offset 256
  .amdhsa_group_segment_fixed_size 0
  .amdhsa_kernarg_size 56
  .amdhsa_user_sgpr_count 2
  .amdhsa_user_sgpr_kernarg_segment_ptr 1
  .amdhsa_system_sgpr_workgroup_id_x 1
.end_amdhsa_kernel
"""
        return s

if __name__ == "__main__":
    g = Gen(stamps=False); open('cdna_kernels/' + NAME + '.s', 'w').write(g.build())
    ns = [f"glu{i}" for i in range(5)] + [f"cv{i}" for i in range(4)]
    g = Gen(stamps=True, opts={'nostamp': ns}); open('diag.s', 'w').write(g.build())
    json.dump(g.names, open('diag.json', 'w'))
    ns = [f"B{i}<" for i in range(11)]
    g = Gen(stamps=True, opts={'nostamp': ns}); open('diag2.s', 'w').write(g.build())
    json.dump(g.names, open('diag2.json', 'w'))
    on = ["start", "karg", "xiss", "wiss", "B0<", "B0>", "B1<", "B1>", "end1"] + [f"k{i}" for i in range(16)]
    g = Gen(stamps=True, opts={'only': on}); open('diag3.s', 'w').write(g.build())
    json.dump(g.names, open('diag3.json', 'w'))
```

```python
import re

def regs_of(tok):
    tok = tok.strip().lstrip('-')
    m = re.fullmatch(r'([vs])\[(\d+):(\d+)\]', tok)
    if m: return {(m.group(1), i) for i in range(int(m.group(2)), int(m.group(3)) + 1)}
    m = re.fullmatch(r'([vs])(\d+)', tok)
    if m: return {(m.group(1), int(m.group(2)))}
    if tok in ('vcc', 'vcc_lo'): return {('s', 'vcc')}
    if tok == 'm0': return {('s', 'm0')}
    if tok in ('exec', 'exec_lo'): return {('s', 'exec')}
    return set()

TRANS = ('v_exp_', 'v_rcp_', 'v_log_', 'v_rsq_', 'v_sqrt_')

class Ins:
    def __init__(self, text, tag=None):
        self.text = text
        self.tag = tag
        t = text.split(';')[0].strip()
        self.is_label = t.endswith(':') or t.startswith('.') or t == ''
        self.mn = t.split()[0] if t and not self.is_label else ''
        rest = t[len(self.mn):].strip()
        ops = [o.strip() for o in rest.split(',')] if rest else []
        if ops:
            ops[-1:] = ops[-1].split()
        self.ops = ops
        mn = self.mn
        self.defs, self.uses = set(), set()
        self.kind = 'other'
        self.passes = 0
        if mn.startswith('v_mfma'):
            self.kind = 'mfma'
            self.passes = 8 if '32x32x16' in mn else (4 if '16x16x32' in mn else 2)
            self.defs = regs_of(ops[0]); self.srcA = regs_of(ops[1]); self.srcB = regs_of(ops[2]); self.srcC = regs_of(ops[3])
            self.uses = self.srcA | self.srcB | self.srcC
        elif mn.startswith('v_'):
            self.kind = 'valu'
            self.defs = regs_of(ops[0])
            for o in ops[1:]: self.uses |= regs_of(o)
            if mn.startswith(('v_fmac', 'v_permlane')): self.uses |= self.defs
            if mn.startswith('v_permlane'): self.defs |= regs_of(ops[1])
        elif mn.startswith('ds_read'):
            self.kind = 'ds'
            self.defs = regs_of(ops[0]); self.uses = regs_of(ops[1])
        elif mn.startswith('ds_'):
            self.kind = 'ds'
            for o in ops: self.uses |= regs_of(o)
        elif mn.startswith(('buffer_load', 'global_load')):
            self.kind = 'vm'
            if 'lds' in ops:
                for o in ops: self.uses |= regs_of(o)
                self.uses |= {('s', 'm0')}
            else:
                self.defs = regs_of(ops[0])
                for o in ops[1:]: self.uses |= regs_of(o)
        elif mn.startswith(('buffer_', 'global_')):
            self.kind = 'vm'
            for o in ops: self.uses |= regs_of(o)
            self.wide_store = 'x4' in mn or 'x3' in mn
            self.data = regs_of(ops[0])
        elif mn.startswith('s_'):
            self.kind = 'salu'
            if mn.startswith(('s_cmp', 's_waitcnt', 's_barrier', 's_nop', 's_branch', 's_cbranch', 's_setprio', 's_endpgm', 's_setpc', 's_sleep')):
                for o in ops: self.uses |= regs_of(o)
            else:
                if ops: self.defs = regs_of(ops[0])
                for o in ops[1:]: self.uses |= regs_of(o)
        self.trans = mn.startswith(TRANS)

class Trace:
    def __init__(self, parent=None):
        self.out = []
        if parent is None:
            self.hist = []
            self.state = 0
            self.ptime = 0
            self.mfree = 0
            self.lds = []
            self.vm = []
        else:
            self.hist = list(parent.hist); self.state = parent.state
            self.ptime = parent.ptime; self.mfree = parent.mfree
            self.lds = list(parent.lds); self.vm = list(parent.vm)
        self.nnop = 0
    def raw(self, text):
        self.out.append(text)
    def _push(self, ins):
        self.out.append('    ' + ins.text)
        n = 1
        if ins.mn == 's_nop': n = int(ins.ops[0]) + 1
        if ins.kind == 'mfma':
            self.ptime = max(self.ptime, self.mfree)
            self.mfree = self.ptime + ins.passes
        ins.ptime = self.ptime
        self.ptime += n
        self.hist.append((ins, self.state))
        self.state += n
        if len(self.hist) > 40: self.hist = self.hist[-40:]
    def _wait(self, lg=None, vm=None):
        parts = []
        if vm is not None:
            vm = min(vm, 62); parts.append(f'vmcnt({vm})'); self.vm = self.vm[len(self.vm) - vm:] if vm else []
        if lg is not None:
            lg = min(lg, 14); parts.append(f'lgkmcnt({lg})'); self.lds = self.lds[len(self.lds) - lg:] if lg else []
        self._push(Ins('s_waitcnt ' + ' '.join(parts)))
    def wait_op(self, *handles):
        lg = vm = None
        for h in handles:
            if h in self.lds:
                n = len(self.lds) - 1 - self.lds.index(h); lg = n if lg is None else min(lg, n)
            if h in self.vm:
                n = len(self.vm) - 1 - self.vm.index(h); vm = n if vm is None else min(vm, n)
        if lg is not None or vm is not None: self._wait(lg, vm)
    def wait_lds(self):
        if self.lds: self._wait(lg=0)
    def wait_vm(self):
        if self.vm: self._wait(vm=0)
    def __call__(self, text):
        ins = Ins(text)
        if ins.is_label:
            self.out.append(text); return ins
        touched = ins.defs | ins.uses
        need = [h for h in self.lds + self.vm if h.defs & touched]
        if ins.kind == 'ds':
            need = [h for h in need if not (h.kind == 'ds' and not (h.defs & ins.uses))]
        if need: self.wait_op(*need)
        req = 0
        for p, st in self.hist:
            have = self.state - st - (int(p.ops[0]) + 1 if p.mn == 's_nop' else 1)
            if p.kind == 'mfma' and ins.kind in ('valu', 'mfma') and p.passes == 8:
                now = max(self.ptime, self.mfree) if ins.kind == 'mfma' else self.ptime
                have = max(have, now - p.ptime - 1)
            w = self.hazard(p, ins)
            if w > have: req = max(req, w - have)
        while req > 0:
            k = min(req, 16)
            self._push(Ins(f's_nop {k-1}')); self.nnop += 1
            req -= k
        self._push(ins)
        if ins.kind == 'ds': self.lds.append(ins)
        if ins.mn.startswith('ds_write'): self.lastw = ins
        if ins.kind == 'vm': self.vm.append(ins)
        if ins.mn == 's_waitcnt':
            m = re.search(r'lgkmcnt\((\d+)\)', text)
            if m:
                n = int(m.group(1)); self.lds = self.lds[len(self.lds) - n:] if n and len(self.lds) > n else ([] if n == 0 else self.lds)
            m = re.search(r'vmcnt\((\d+)\)', text)
            if m:
                n = int(m.group(1)); self.vm = self.vm[len(self.vm) - n:] if n and len(self.vm) > n else ([] if n == 0 else self.vm)
        return ins
    @staticmethod
    def hazard(p, c):
        w = 0
        vd = {r for r in p.defs if r[0] == 'v'}
        sd = {r for r in p.defs if r[0] == 's'}
        if p.kind == 'valu':
            if c.kind == 'mfma' and vd & c.uses: w = max(w, 2)
            if p.trans and c.kind in ('valu', 'ds', 'vm') and vd & c.uses: w = max(w, 1)
            if c.mn.startswith(('v_readfirstlane', 'v_readlane')) and vd & c.uses: w = max(w, 1)
            if c.mn.startswith('v_permlane') and vd & c.uses: w = max(w, 2)
            if 'dpp' in c.text and vd & c.uses: w = max(w, 2)
            if sd & c.uses:
                if c.kind == 'vm': w = max(w, 5)
                elif c.kind in ('valu', 'mfma'): w = max(w, 2)
                elif c.kind == 'salu' and not p.mn.startswith('v_cmp'): w = max(w, 1)
            if ('s', 'exec') in sd and c.kind == 'mfma': w = max(w, 4)
        if p.kind == 'mfma':
            big = {2: 5, 4: 8, 8: 12}[p.passes]
            if c.kind == 'mfma':
                if vd & (c.srcA | c.srcB): w = max(w, big)
                if vd & c.srcC:
                    if vd == c.srcC and p.passes == c.passes: w = max(w, 2 if p.passes == 2 else 0)
                    else: w = max(w, {2: 4, 4: 6, 8: 10}[p.passes])
                elif vd & c.defs:
                    w = max(w, big)
            elif c.kind in ('valu', 'ds', 'vm'):
                if vd & (c.uses | c.defs): w = max(w, big)
                if c.kind == 'valu' and p.srcC & c.defs: w = max(w, {2: 1, 4: 3, 8: 7}[p.passes])
        if p.kind == 'vm' and getattr(p, 'wide_store', False) and p.data & c.defs: w = max(w, 2)
        if p.kind == 'salu' and ('s', 'm0') in sd and c.kind == 'vm' and ('s', 'm0') in c.uses: w = max(w, 1)
        return w
```

```python
import sys, struct, json, re
import asmlib
from asmlib import Trace
NAME = "standalone__conformer_conv_module__speech"
def f2u(x): return struct.unpack('<I', struct.pack('<f', x))[0]
LOG2E = 1.4426950408889634; LN2 = 0.6931471805599453
NWG = 256
W2T = 3 << 18
FLG = 1 << 19

XB, XSZ = 0, 16896
SB = 50688
GB, GSZ = 116224, 4608
SP, SPQ = 153088, 2688
LDS = 163840
FB = SP + 2432
vXA, vTR, vGW, vGR, vSW, vOG, vXL, vW1 = range(8)
vFL = vW1
vOW, vOR = 124, vXA
TT = 8
R0 = 44
WW = 128
FR = 64
def V(i, n=1): return f"v{i}" if n == 1 else f"v[{i}:{i+n-1}]"
def R(i, n=1): return V(R0+i, n)
def Wt(s, j): return WW + 8*s + 4*j
WA = [None, R(80), R(81), R(82)]
sX, sW1, sDW, sW2, sO, sWS, sDBG = "s[4:7]", "s[8:11]", "s[12:15]", "s[16:19]", "s[20:23]", "s[24:27]", "s[28:31]"
sWAVE, sXROW, sT0, sT1 = "s32", "s33", "s34", "s35"
sK, sK2, sT2, sSQ, sGQ, sXQ, sQ = "s36", "s37", "s38", "s39", "s40", "s41", "s3"
sM1, sM2, sM3 = "s[42:43]", "s[44:45]", "s[46:47]"
sSPQ, sEX, sJ, sT3 = "s48", "s49", "s50", "s51"
sWM = "s[0:1]"
STAMP0 = 52

def merge(main, side, start=0, step=1):
    out = []; side = list(side); k = 0
    for i, m in enumerate(main):
        out.append(m)
        while k < len(side) and start + k*step <= i:
            out.append(side[k]); k += 1
    out += side[k:]
    return out
def quad(D, gi, e): return D[5*gi + e] if isinstance(D, list) else D + 20*gi + 4*e
def w2row(s): return (32*(s//4 + 4*((s//2) & 1)) + 16*(s & 1)) * 512

def helper(stamps=False):
    t = Trace()
    t("L_helper:")
    t("s_add_u32 s2, s2, 4")
    t("v_lshrrev_b32 v1, 6, v0")
    t("v_and_b32 v2, 63, v0")
    t("v_readfirstlane_b32 s3, v1")
    t("v_lshrrev_b32 v3, 5, v2")
    t("v_bfe_u32 v4, v2, 2, 3")
    t("v_bcnt_u32_b32 v4, v4, 0")
    t("v_and_b32 v4, 1, v4")
    t("v_lshl_or_b32 v4, v3, 1, v4")
    t("v_bfe_u32 v5, v2, 3, 2")
    t("v_lshl_or_b32 v4, v5, 2, v4")
    t("v_and_b32 v5, 3, v2")
    t("v_lshlrev_b32 v5, 4, v5")
    t("v_lshl_add_u32 v4, v4, 9, v5")
    t("s_lshr_b32 s32, s3, 1"); t("s_and_b32 s33, s3, 1"); t("s_lshl_b32 s33, s33, 2"); t("s_add_u32 s32, s32, s33")
    t("s_lshl_b32 s32, s32, 14")
    t("s_lshl_b32 s33, s2, 7"); t("s_add_u32 s32, s32, s33")
    t("s_add_u32 s33, s32, 8192")
    t("s_lshl_b32 s34, s3, 12")
    t("s_mov_b32 s18, 131072"); t("s_mov_b32 s19, 0x20000")
    t("s_mov_b32 s26, 0x10000000"); t("s_mov_b32 s27, 0x20000")
    t("s_mov_b32 s30, 256"); t("s_mov_b32 s31, 0x20000")
    t("s_waitcnt lgkmcnt(0)")
    for k in range(4):
        t(f"s_add_u32 m0, s34, {1024*k - 64*(k % 2)}")
        t(f"buffer_load_dwordx4 v4, s[16:19], s{32 + k//2} offen offset:{64*(k % 2)} lds")
    t("v_lshrrev_b32 v6, 1, v0"); t("v_lshlrev_b32 v6, 7, v6"); t("v_and_b32 v7, 1, v0"); t("v_lshl_add_u32 v6, v7, 4, v6")
    t("v_and_b32 v6, 0x1fff, v6")
    for r in range(8, 12): t(f"v_mov_b32 v{r}, 0")
    t("s_lshl_b32 s35, s2, 13"); t(f"s_add_u32 s35, s35, {FLG}")
    t("s_cmp_ge_u32 s3, 2"); t("s_cbranch_scc1 L_h1")
    t("buffer_store_dwordx4 v[8:11], v6, s[24:27], s35 offen sc1")
    t("L_h1:")
    t("v_bfe_u32 v5, v2, 2, 2"); t("v_lshlrev_b32 v5, 6, v5"); t("v_lshl_or_b32 v5, v3, 9, v5")
    t("v_bfe_u32 v7, v2, 4, 1"); t("v_lshl_or_b32 v5, v7, 5, v5")
    t("v_and_b32 v7, 1, v2"); t("v_lshl_or_b32 v5, v7, 4, v5")
    t("v_bfe_u32 v7, v2, 1, 1"); t("v_lshl_or_b32 v5, v7, 3, v5")
    t("v_add_u32 v5, s34, v5")
    t("v_lshlrev_b32 v7, 4, v2")
    t("s_lshl_b32 s35, s2, 15"); t("s_add_u32 s35, s35, s34"); t(f"s_add_u32 s35, s35, {W2T}")
    t("s_waitcnt vmcnt(0)")
    if stamps: t("s_memrealtime s[60:61]")
    for k in range(4):
        for u in range(2): t(f"ds_read_b64_tr_b16 v[{12+4*k+2*u}:{13+4*k+2*u}], v5 offset:{1024*k + 256*u}")
    for k in range(4): t(f"buffer_store_dwordx4 v[{12+4*k}:{15+4*k}], v7, s[24:27], s35 offen offset:{1024*k} sc1")
    t("v_mov_b32 v2, 1"); t("v_lshlrev_b32 v3, 8, v0"); t("s_lshl_b32 s35, s2, 2")
    t("v_add_u32 v3, s35, v3")
    t("s_waitcnt vmcnt(0)")
    t("s_barrier")
    if stamps: t("s_memrealtime s[62:63]")
    t("buffer_store_dword v2, v3, s[28:31], 0 offen sc1")
    if stamps:
        t("s_waitcnt vmcnt(0)"); t("s_memrealtime s[64:65]"); t("s_waitcnt lgkmcnt(0)")
        t("s_add_u32 s35, s2, 252"); t("s_lshl_b32 s35, s35, 3"); t("s_add_u32 s35, s35, s3"); t("s_lshl_b32 s35, s35, 7")
        for k, r in enumerate((98, 60, 62, 64)): t(f"v_mov_b32 v{8+k}, s{r}")
        t("buffer_store_dwordx4 v[8:11], off, s[24:27], s35")
    return '\n' + '\n'.join(t.out)
class Gen:
    def __init__(self, stamps=False, opts=None):
        self.stamps = stamps
        self.o = dict(prioX=1, prioX2=2, prioY=0, prioS=1, prioC=3, prioP=2, prioG2P=0, prioU=2, pf=5, pre=3); self.o.update(opts or {})
        self.names = {}
    def run(self, t, ops):
        for op in ops:
            if isinstance(op, str): t(op)
            elif isinstance(op, (list, tuple)): self.run(t, op)
            elif op is not None: op()
    def stamp(self, t, name):
        if self.o.get('probe') and name == self.o.get('probe0', 'start'): t("s_memrealtime s[98:99]")
        if self.o.get('probe') == name: t("s_memrealtime s[96:97]")
        if not self.stamps: return
        if name not in self.o['only']: return
        k = t.nstamp; t.nstamp += 1
        assert STAMP0 + 2*k + 1 <= 97, name
        t.stamp_names.append(name)
        t(f"s_memtime s[{STAMP0+2*k}:{STAMP0+2*k+1}]")
    def st(self, t, name): return lambda: self.stamp(t, name)
    def PX(self): return f"s_setprio {self.o['prioX']}"
    def PY(self): return f"s_setprio {self.o['prioY']}"
    def PX2(self): return f"s_setprio {self.o['prioX2']}"
    def PC(self): return f"s_setprio {self.o['prioC']}"
    def weave(self, t, mf, fill):
        for g, m in enumerate(mf):
            t(m); self.run(t, fill.get(g, []))

    def prologue(self, t):
        t.nstamp = 0; t.stamp_names = []
        self.stamp(t, "start")
        if self.stamps: t("s_memrealtime s[98:99]")
        t(f"s_cmp_ge_u32 s2, {NWG}")
        t("s_cbranch_scc1 L_end")
        ka = self.o.get('ka', 0)
        if ka == 3:
            t("v_cmp_gt_u32 vcc, 64, v0")
            t("s_cbranch_vccz L_kw")
            t("s_load_dwordx8 s[60:67], s[0:1], 0")
            t("s_load_dwordx8 s[68:75], s[0:1], 24")
            t("s_waitcnt lgkmcnt(0)")
            t("L_kw:")
            t("s_barrier")
        if ka == 0:
            t("s_load_dwordx2 s[4:5], s[0:1], 0")
            t("s_load_dwordx2 s[8:9], s[0:1], 8")
            t("s_load_dwordx2 s[12:13], s[0:1], 16")
            t("s_load_dwordx2 s[16:17], s[0:1], 24")
            t("s_load_dwordx2 s[20:21], s[0:1], 32")
            t("s_load_dwordx2 s[28:29], s[0:1], 40")
            t("s_load_dwordx2 s[24:25], s[0:1], 48")
        else:
            t("s_load_dwordx8 s[80:87], s[0:1], 0")
            t("s_load_dwordx8 s[88:95], s[0:1], 24")
        l, h, a, b, c, d = R(0), R(1), R(2), R(3), R(4), R(5)
        t("s_sub_u32 s2, s2, 4")
        t("s_cbranch_scc1 L_helper")
        t(f"v_lshrrev_b32 {a}, 6, v0")
        t(f"v_and_b32 {l}, 63, v0")
        t(f"v_readfirstlane_b32 {sWAVE}, {a}")
        t(f"v_lshrrev_b32 {h}, 5, {l}")
        t(f"s_lshl_b32 {sT0}, {sWAVE}, 6")
        t(f"v_xor_b32 {a}, {l}, {h}")
        t(f"v_lshlrev_b32 v{vXL}, 4, {a}")
        t(f"v_and_b32 {c}, 3, {l}")
        t(f"v_lshlrev_b32 {d}, 4, {c}")
        t(f"v_add_u32 {R(6)}, {sT0}, {d}")
        t(f"v_lshrrev_b32 {b}, 2, {l}")
        t(f"v_lshl_add_u32 v{vW1}, {b}, 10, {R(6)}")
        t(f"v_lshl_add_u32 {R(7)}, {b}, 9, {R(6)}")
        t(f"v_add_u32 {R(8)}, 8192, {R(7)}")
        t("s_cmp_ge_u32 s2, 126")
        t(f"s_cselect_b32 {sT0}, 8192000, 0")
        t(f"s_cselect_b32 {sJ}, 126, 0")
        t(f"s_sub_u32 {sJ}, s2, {sJ}")
        t(f"s_lshl_b32 {sT1}, {sJ}, 16")
        t(f"s_and_b32 {sQ}, {sWAVE}, 3")
        t(f"s_lshl_b32 {sSQ}, {sQ}, 12")
        t(f"s_add_u32 {sXROW}, {sSQ}, {sT1}")
        t(f"s_sub_u32 {sXROW}, {sXROW}, 8192")
        t(f"s_add_u32 {sSQ}, {sSQ}, {SB}")
        t(f"s_mul_i32 {sXQ}, {sQ}, {4*1056}")
        t(f"s_mul_i32 {sGQ}, {sQ}, {2*GSZ}"); t(f"s_add_u32 {sGQ}, {sGQ}, {GB}")
        t("s_mov_b32 s6, 8192000"); t("s_mov_b32 s7, 0x20000")
        t("s_mov_b32 s10, 262144"); t("s_mov_b32 s11, 0x20000")
        t("s_mov_b32 s14, 15872"); t("s_mov_b32 s15, 0x20000")
        t(f"s_add_u32 {sT1}, {sT0}, {sT1}")
        t(f"s_lshr_b32 {sT2}, {sWAVE}, 2")
        t(f"s_lshl_b32 {sK}, {sT2}, 14")
        t(f"s_add_u32 {sK}, {sK}, {sXROW}")
        t(f"s_mul_i32 {sT2}, {sT2}, {XSZ}")
        t(f"s_add_u32 {sT2}, {sT2}, {sXQ}")
        for q in range(4):
            t(f"v_add_u32 {R(24+q)}, {sK}, v{vXL}")
            if q < 3: t(f"s_add_u32 {sK}, {sK}, 1024")
        t(f"s_bfe_u32 {sK}, s2, 0x40003")
        t(f"s_lshl_b32 {sK}, {sK}, 14")
        t(f"v_lshl_add_u32 {R(11)}, v0, 6, {sK}")
        if self.o['pf'] & 4: t(f"v_and_b32 {R(11)}, 0xfffffeff, {R(11)}")
        t("s_waitcnt lgkmcnt(0)")
        self.stamp(t, "karg")
        if ka:
            t("s_mov_b64 s[12:13], s[84:85]"); t("s_mov_b64 s[8:9], s[82:83]")
            t(f"s_add_u32 s4, s80, {sT0}"); t("s_addc_u32 s5, s81, 0")
            t("s_mov_b64 s[16:17], s[88:89]"); t("s_mov_b64 s[20:21], s[90:91]"); t("s_mov_b64 s[28:29], s[92:93]"); t("s_mov_b64 s[24:25], s[94:95]")
        else:
            t(f"s_add_u32 s4, s4, {sT0}"); t("s_addc_u32 s5, s5, 0")
        tw = self.o.get('tw', 0)
        if tw & 1:
            t(f"s_lshl_b32 {sK}, {sJ}, 16"); t(f"s_min_u32 {sK}, {sK}, {8192000-64}")
            t(f"s_load_dword s42, s[4:5], {sK}")
            t("s_load_dword s43, s[8:9], 0")
            t("s_load_dword s37, s[12:13], 0")
        t("s_setprio 3")
        t(f"s_cmp_ge_u32 {sWAVE}, 4")
        t("s_cbranch_scc1 L_pF")
        self.x01 = {}; self.dwh2 = {}; self.vm0 = {}
        for grp in 'LF':
            t.vm = []
            if grp == 'F': t("L_pF:")
            for ch in self.o.get('ord' + grp, {'L': 'dpx', 'F': 'xc'}[grp]):
                if ch == 'd':
                    self.dwh2[grp] = []
                    for v in range(4):
                        t(f"s_add_u32 m0, {sGQ}, {64 + 1024*(v % 2) + (GSZ - 256)*(v // 2)}")
                        self.dwh2[grp].append(t(f"buffer_load_dwordx4 {R(7+v%2)}, {sDW}, 0 offen offset:{256*(v//2)} lds"))
                if ch == 'x':
                    self.x01[grp] = []
                    for q in range(4):
                        t(f"s_add_u32 m0, {sT2}, {XB + q*1056}")
                        self.x01[grp].append(t(f"buffer_load_dwordx4 {R(24+q)}, {sX}, 0 offen nt lds"))
                if ch == 'p':
                    if grp == 'F': t(f"v_subrev_u32 {R(11)}, {16384 - (256 if self.o['pf'] & 4 else 0)}, {R(11)}")
                    t(f"buffer_load_dword {V(254)}, {R(11)}, {sW1}, 0 offen")
                if ch == 'c':
                    t("s_getpc_b64 s[44:45]")
                    t(f"L_pc{grp}:")
                    t(f"s_mov_b32 s46, L_code_end-L_pc{grp}"); t("s_mov_b32 s47, 0x20000")
                    t(f"s_bfe_u32 {sT0}, s2, 0x30003")
                    t(f"s_lshl_b32 {sT0}, {sT0}, 12")
                    if grp == 'F': t(f"s_sub_u32 {sT0}, {sT0}, 4096")
                    t(f"v_lshl_add_u32 {R(9)}, v0, 4, {sT0}")
                    t(f"buffer_load_dword {V(255)}, {R(9)}, s[44:47], 0 offen")
            self.vm0[grp] = list(t.vm)
            if grp == 'L': t("s_branch L_p4")
        t("L_p4:")
        t("s_setprio 0")
        t.vm = []
        if tw & 1: t("s_waitcnt lgkmcnt(0)")
        self.stamp(t, "xiss")
        t(f"s_add_u32 s20, s20, {sT1}"); t("s_addc_u32 s21, s21, 0")
        t("s_mov_b32 s22, 65536"); t("s_mov_b32 s23, 0x20000")
        t("s_mov_b32 s26, 0x10000000"); t("s_mov_b32 s27, 0x20000")
        t("s_mov_b32 s30, 256"); t("s_mov_b32 s31, 0x20000")
        t(f"s_mul_i32 {sSPQ}, {sQ}, {SPQ}"); t(f"s_add_u32 {sSPQ}, {sSPQ}, {SP}")
        self.addr_rest(t)

    def addr_rest(self, t):
        l, h, a, b, c, d = R(0), R(1), R(2), R(3), R(4), R(5)
        e, f = R(9), R(10)
        t(f"v_bfe_u32 {e}, {l}, 2, 2")
        t(f"v_lshlrev_b32 {e}, 6, {e}")
        t(f"v_lshl_or_b32 {e}, {h}, 9, {e}")
        t(f"v_bfe_u32 {R(13)}, {l}, 4, 1")
        t(f"v_lshl_or_b32 {e}, {R(13)}, 5, {e}")
        t(f"v_lshl_or_b32 {R(12)}, {c}, 3, {e}")
        t(f"s_lshl_b32 s0, 1, {sWAVE}"); t("s_mov_b32 s1, 0")
        t(f"s_add_u32 {sT0}, {sGQ}, {GSZ + 2240}")
        t(f"s_sub_u32 {sT1}, {sSPQ}, {sT0}")
        t(f"s_cmp_ge_u32 {sWAVE}, 4")
        t("s_cbranch_scc1 L_notab")
        t(f"v_bfe_u32 {e}, {l}, 2, 2")
        t(f"v_and_b32 {f}, 13, {l}")
        t(f"v_bcnt_u32_b32 {f}, {f}, 0")
        t(f"v_and_b32 {f}, 1, {f}")
        t(f"v_lshl_or_b32 {f}, {e}, 1, {f}")
        t(f"v_bfe_u32 {e}, {l}, 1, 1")
        t(f"v_lshl_or_b32 {f}, {e}, 3, {f}")
        t(f"v_mul_u32_u24 {f}, 144, {f}")
        t(f"v_mad_u32_u24 {e}, {R(13)}, {sT1}, {f}")
        t(f"v_add_u32 {R(60)}, {sT0}, {e}")
        t(f"s_add_u32 {sT0}, {sSQ}, {2*16384}")
        t(f"s_mov_b32 {sT1}, 16384")
        t(f"v_lshl_add_u32 {e}, {R(13)}, 14, {f}")
        t(f"v_add_u32 {R(14)}, {sT0}, {e}")
        t(f"v_mov_b32 {R(15)}, 0")
        t(f"v_and_b32 {e}, 15, {l}")
        t(f"v_mul_u32_u24 {f}, {GSZ}, {h}")
        t(f"v_lshl_add_u32 {e}, {e}, 2, {f}")
        t(f"v_add_u32 {e}, {sGQ}, {e}")
        t(f"ds_write_b32 {e}, {R(15)}")
        t(f"v_lshlrev_b32 {e}, 2, {l}")
        t(f"v_add_u32 {e}, {FB}, {e}")
        t(f"ds_write_b32 {e}, {R(15)}")
        t(f"v_cmp_eq_u32 vcc, 0, {h}")
        t(f"v_lshlrev_b32 {f}, 4, {h}")
        t(f"v_lshl_add_u32 {f}, {R(13)}, 3, {f}")
        t(f"v_cndmask_b32 {e}, {R(60)}, {R(14)}, vcc")
        t(f"ds_write2_b32 {e}, {R(15)}, {R(15)} offset0:0 offset1:1")
        t(f"ds_write2_b32 {e}, {R(15)}, {R(15)} offset0:18 offset1:35")
        t(f"ds_write_b32 {e}, {R(15)} offset:144")
        t(f"v_add_u32 {R(16)}, {f}, {R(14)}")
        t(f"v_xor_b32 {R(17)}, 8, {R(16)}")
        t(f"v_add_u32 {R(60)}, {f}, {R(60)}")
        t(f"v_xor_b32 {R(61)}, 8, {R(60)}")
        t(f"v_lshlrev_b32 {e}, 8, {R(13)}")
        t(f"v_add3_u32 {R(18)}, {e}, {R(12)}, {sGQ}")
        t(f"v_xor_b32 {R(19)}, 256, {R(18)}")
        t("L_notab:")
        self.taddr(t, R(20), R(21), b, c, e, f)
        t(f"s_mov_b32 {sK}, {hex(f2u(-LN2))}")
        t(f"s_mov_b32 {sK2}, {hex(f2u(-LOG2E))}")
        t(f"v_bfe_u32 {a}, {l}, 2, 3")
        t(f"v_bcnt_u32_b32 {a}, {a}, 0")
        t(f"v_and_b32 {a}, 1, {a}")
        t(f"v_lshl_or_b32 {a}, {h}, 1, {a}")
        t(f"v_bfe_u32 {e}, {l}, 3, 2")
        t(f"v_lshl_or_b32 {a}, {e}, 2, {a}")
        t(f"s_lshl_b32 {sT0}, {sQ}, 7")
        t(f"v_lshlrev_b32 {e}, 9, {a}")
        t(f"v_add3_u32 v{vOG}, {e}, {d}, {sT0}")
        t(f"s_sub_u32 {sT0}, {sGQ}, 64")
        t(f"v_mul_u32_u24 {e}, 144, {a}")
        t(f"v_add3_u32 v{vGR}, {e}, {d}, {sT0}")
        t(f"v_and_b32 {e}, 31, {l}")
        t(f"v_mul_u32_u24 {e}, 144, {e}")
        t(f"v_lshlrev_b32 {f}, 4, {h}")
        t(f"v_add3_u32 v{vGW}, {e}, {f}, {sGQ}")
        t(f"v_lshl_add_u32 v{vSW}, {l}, 4, {sSQ}")
        t(f"v_add_u32 v{vTR}, {SB}, {R(12)}")
        t(f"v_add_u32 {R(80)}, {sSQ}, {R(12)}")
        t(f"v_add_u32 {R(81)}, {sGQ}, {R(12)}")
        t(f"v_add_u32 {R(82)}, {sXQ}, {R(12)}")
        t(f"v_and_b32 {e}, 0x13, {l}")
        t(f"v_bfe_u32 {f}, {l}, 2, 1")
        t(f"v_lshl_or_b32 {e}, {f}, 3, {e}")
        t(f"v_bfe_u32 {f}, {l}, 3, 1")
        t(f"v_lshl_or_b32 {e}, {f}, 2, {e}")
        t(f"v_lshrrev_b32 {f}, 1, {e}")
        t(f"v_mul_u32_u24 {f}, 1056, {f}")
        t(f"v_and_b32 {e}, 1, {e}")
        t(f"v_lshl_add_u32 {f}, {e}, 9, {f}")
        t(f"v_xor_b32 {e}, {e}, {h}")
        t(f"v_lshl_add_u32 v{vXA}, {e}, 4, {f}")
        for m, v in ((42, 0x88888888), (44, 0xcccccccc), (46, 0xeeeeeeee)):
            t(f"s_mov_b32 s{m}, {hex(v)}"); t(f"s_mov_b32 s{m+1}, {hex(v)}")
        t(f"s_lshl_b32 {sEX}, s2, 14")
        t(f"s_add_u32 {sEX}, {sEX}, {(1<<20) - SB}")
    def taddr(self, t, d0, d1, b, c, e, f):
        t(f"v_and_b32 {e}, 1, {c}")
        t(f"v_mul_u32_u24 {e}, 72, {e}")
        t(f"v_lshrrev_b32 {f}, 1, {c}")
        t(f"v_lshl_add_u32 {e}, {f}, 2, {e}")
        t(f"v_mul_u32_u24 {f}, 144, {b}")
        t(f"v_sub_u32 {f}, {f}, {e}")
        t(f"s_add_u32 {sT0}, {sT0}, {19*4}")
        t(f"v_add_u32 {d0}, {sT0}, {f}")
        t(f"v_add_u32 {d1}, {sT1}, {d0}")
    def tload(self, base, a0, a1):
        return [f"ds_read2_b32 {V(base+18*gi+2*s,2)}, {(a0,a1)[gi]} offset0:{2*s} offset1:{2*s+1}" for gi in range(2) for s in range(9)]
    def tbuild2(self, t):
        for F in range(2):
            t.wait_op(*self.dwh[2*F:2*F+2])
            B = 24 + 16*F
            for k in range(2):
                for v in range(2):
                    for u in range(2):
                        t(f"ds_read_b64_tr_b16 {R(B+8*k+4*v+2*u,2)}, {R(18+u)} offset:{F*GSZ + 64*(1-k) + v*1024}")
        for F in range(2):
            B = 24 + 16*F; A = (16, 60)[F]
            for v in range(2):
                for u in range(2):
                    t(f"ds_write_b64 {R(A+u)}, {R(B+4*v+2*u,2)} offset:{8+32*v}")
            for v in range(2):
                for u in range(2):
                    t(f"ds_write2_b32 {R(A+u)}, {R(B+8+4*v+2*u)}, {R(B+9+4*v+2*u)} offset0:{19+8*v} offset1:{20+8*v}")

    def xdma(self, t, c, tmp):
        hs = []
        for q in range(4):
            t(f"s_add_u32 {sT1}, {sXROW}, {c*16384 + q*1024}")
            t(f"s_add_u32 m0, {sXQ}, {XB + (c%3)*XSZ + q*1056}")
            t(f"v_add_u32 {tmp}, {sT1}, v{vXL}")
            hs.append(t(f"buffer_load_dwordx4 {tmp}, {sX}, 0 offen nt lds"))
        return hs
    def slot(self, kind, i, regs, F=0):
        if kind == 's': return (sSQ, (i // 2)*16384 + F*2048 + (i % 2)*1024, regs['s'])
        if kind == 'g': return (sGQ, F*GSZ + i*1024, regs['g'])
        if kind == 'p': return (sSPQ, i*1024, regs['p'])
        if kind[0] == 'x': return (sXQ, XB + int(kind[1])*XSZ + i*1024, regs['x'])
    def wdma1(self, t, which, s, pair, j):
        base, off, _ = pair[j]
        jo = 512*j if which == 1 else 64*j
        t(f"s_add_u32 m0, {base}, {off - jo}")
        if j == 0: t(f"s_mov_b32 {sT2}, {s*16384 if which == 1 else w2row(s)}")
        return t(f"buffer_load_dwordx4 v{vW1 if which == 1 else vOG}, {sW1 if which == 1 else sW2}, {sT2} offen offset:{jo} lds")
    def wdma(self, t, which, s, pair): return [self.wdma1(t, which, s, pair, j) for j in range(2)]
    def trtile(self, t, dst, sl):
        _, off, a = sl
        return [t(f"ds_read_b64_tr_b16 {V(dst+2*u,2)}, {a} offset:{off+256*u}") for u in range(2)]

    def xrd(self, c, s, fr):
        return f"ds_read_b128 {R(fr,4)}, v{vXA} offset:{XB + (c%3)*XSZ + 32*s}"
    def mm1(self, s, j, acc, fr):
        a = R(acc + 16*j, 16)
        return f"v_mfma_f32_32x32x16_bf16 {a}, {R(fr,4)}, {V(Wt(s,j),4)}, {a if s else 0}"
    def m0so(self, which, s, pair, j):
        base, off, _ = pair[j]
        jo = 512*j if which == 1 else 64*j
        o = [f"s_add_u32 m0, {base}, {off - jo}"]
        if j == 0: o.append(f"s_mov_b32 {sT2}, {s*16384 if which == 1 else w2row(s)}")
        return o
    def dmaonly(self, which, j):
        jo = 512*j if which == 1 else 64*j
        return f"buffer_load_dwordx4 v{vW1 if which == 1 else vOG}, {sW1 if which == 1 else sW2}, {sT2} offen offset:{jo} lds"
    def g1p(self, t, pairs, pend, D, hooks):
        f0 = lambda s: FR + 4*(s % 2)
        f1 = lambda s: FR + 8 + 4*(s % 2)
        last = {}
        def rdA(s):
            t.wait_op(*pend[s]); self.trtile(t, Wt(s,0), pairs[s][0]); t(self.xrd(0, s, f0(s)))
        def rdB(s):
            self.trtile(t, Wt(s,1), pairs[s][1]); last[s] = t(self.xrd(1, s, f1(s)))
        nxt = max(pend) + 1
        if self.o.get('fast0'):
            for s in range(nxt, D): pend[s] = self.wdma(t, 1, s, pairs[s])
            for s in range(2): rdA(s); rdB(s)
        else:
            for s in range(2): rdA(s); rdB(s)
            for s in range(nxt, D): pend[s] = self.wdma(t, 1, s, pairs[s])
        mf = []; fill = {}
        def dma(s, j): pend.setdefault(s, []).append(t(self.dmaonly(1, j)))
        if D < 16: self.run(t, self.m0so(1, D, pairs[D], 0))
        t.wait_op(last[0])
        for s in range(16):
            mf += [self.mm1(s, 0, 32, f0(s)), self.mm1(s, 1, 32, f0(s)), self.mm1(s, 1, 0, f1(s)), self.mm1(s, 0, 0, f1(s))]
            g = 4*s
            for k in range(4): fill[g+k] = []
            if s + D < 16:
                fill[g] += [lambda s=s: dma(s+D, 0), self.m0so(1, s+D, pairs[s+D], 1)]
                fill[g+2] += [lambda s=s: dma(s+D, 1)]
            if s + 1 + D < 16: fill[g+2] += [self.m0so(1, s+1+D, pairs[s+1+D], 0)]
            if s + 2 < 16:
                fill[g+1] += [lambda s=s: rdA(s+2)]
                fill[g+3] += [lambda s=s: rdB(s+2)]
            if s + 1 < 16: fill[g+3] += [lambda s=s: t.wait_op(last[s+1])]
            fill[g+3].append(self.st(t, f"k{s}"))
        for g, ops in hooks.items(): fill[g].extend(ops)
        self.weave(t, mf, fill)
    def pre_g1(self, c): return [self.xrd(c, s, FR + 4*s) for s in range(4)]
    def g1(self, t, c, extra={}, wskip=False):
        mf = []; fill = {2: [self.PX2()]}
        for s in range(16):
            fr = FR + 4*(s % 4)
            mf += [self.mm1(s, 1, 0, fr), self.mm1(s, 0, 0, fr)]
            w = extra.get(2*s, [None])[0]
            g = 2*s + (3 if wskip and isinstance(w, str) and w.startswith('ds_write') else 1)
            if s + 4 < 16: fill.setdefault(g, []).append(self.xrd(c, s+4, fr))
        for g, ops in extra.items(): fill.setdefault(g, []).extend(ops)
        self.weave(t, mf, fill)

    def drd(self, o, F, gi, e, D):
        if o % 2 == 0: a, off = f"v{vGR}", 64 + 16*e
        elif e == 0: a, off = f"v{vGR}", 128
        elif e == 4: a, off = f"v{vGR}", 64
        else: a, off = WA[e], 16*e
        return f"ds_read_b128 {V(quad(D, gi, e),4)}, {a} offset:{F*GSZ + gi*2304 + off}"
    def wrapaddr(self):
        return [f"v_add_u32 {WA[3]}, 128, v{vGR}"] + \
               [f"v_cndmask_b32 {dst}, {WA[3]}, v{vGR}, {m}" for dst, m in ((WA[1], sM1), (WA[2], sM2), (WA[3], sM3))]
    def gwr(self, c, F, half, src): return f"ds_write_b128 v{vGW}, {V(src,4)} offset:{F*GSZ + (c%2)*64 + 32*half}"
    def glu_half(self, c, F, half, acc=0, pk=None):
        o = []
        a = [R0 + acc + 8*half + i for i in range(8)]; b = [16 + x for x in a]
        for i in range(8): o.append(f"v_mul_f32 v{b[i]}, {sK2}, v{b[i]}")
        for i in range(10):
            if i < 8: o.append(f"v_exp_f32 v{b[i]}, v{b[i]}")
            if i >= 2: o.append(f"v_fma_f32 v{b[i-2]}, v{b[i-2]}, {sK}, {sK}")
        for i in range(12):
            if i < 8: o.append(f"v_rcp_f32 v{b[i]}, v{b[i]}")
            if 2 <= i < 10: o.append(f"v_mul_f32 v{b[i-2]}, v{a[i-2]}, v{b[i-2]}")
            if i >= 5 and i % 2 == 1:
                k = (i-5)//2
                o.append(f"v_cvt_pk_bf16_f32 v{(pk or a[0])+k}, v{b[2*k]}, v{b[2*k+1]}")
        o.append(self.gwr(c, F, half, pk or a[0]))
        return o
    def si(self, y, tmp, off):
        o = []
        for i in range(10):
            if i < 8: o.append(f"v_exp_f32 v{tmp+i}, v{y+i}")
            if i >= 2: o.append(f"v_fma_f32 v{tmp+i-2}, v{tmp+i-2}, {sK2}, {sK2}")
        for i in range(12):
            if i < 8: o.append(f"v_rcp_f32 v{tmp+i}, v{tmp+i}")
            if 2 <= i < 10: o.append(f"v_mul_f32 v{tmp+i-2}, v{y+i-2}, v{tmp+i-2}")
            if i >= 5 and i % 2 == 1:
                k = (i-5)//2
                o.append(f"v_cvt_pk_bf16_f32 v{y+k}, v{tmp+2*k}, v{tmp+2*k+1}")
        o.append(f"ds_write_b128 v{vSW}, {V(y,4)} offset:{off}")
        return o
    def cv(self, T, D, Y):
        o = []
        for d in range(10):
            for z in range(2):
                s = d - z
                if not 0 <= s < 9: continue
                for gi in range(2):
                    a = V(Y + 8*gi + 4*z, 4)
                    o.append(f"v_mfma_f32_4x4x4_16b_bf16 {a}, {V(T+18*gi+2*s,2)}, {V(quad(D, gi, d//2) + 2*(d % 2),2)}, {a if s else 0}")
        return o
    def cvsi(self, cvops, siops, n=3):
        cost = lambda x: 8 if x.startswith(('v_exp', 'v_rcp')) else 4
        vs = [x for x in siops if isinstance(x, str) and x.startswith('v_')]
        tot = sum(map(cost, vs)); ng = -(-len(cvops)//n)
        out = []; acc = 0; k = 0
        for x in siops:
            while k < ng and acc >= k*tot/ng:
                out += cvops[k*n:(k+1)*n]; k += 1
            out.append(x)
            if isinstance(x, str) and x.startswith('v_'): acc += cost(x)
        return out + cvops[k*n:]
    def si16(self, y, tmp, o, F, cv=None, exa=(), exb=(), exc=(), pre=(), mid=(), pos=None, defer=None, skip=0):
        ex = [f"v_exp_f32 v{tmp+i}, v{y+i}" for i in range(16)]
        fm = [f"v_fma_f32 v{tmp+i}, v{tmp+i}, {sK2}, {sK2}" for i in range(16)]
        rc = [f"v_rcp_f32 v{tmp+i}, v{tmp+i}" for i in range(16)]
        mc = []
        for i in range(16):
            mc.append(f"v_mul_f32 v{tmp+i}, v{y+i}, v{tmp+i}")
            if i >= 3 and i % 2 == 1: k = (i-3)//2; mc.append(f"v_cvt_pk_bf16_f32 v{y+8*(k//4)+k%4}, v{tmp+2*k}, v{tmp+2*k+1}")
        mc.append(f"v_cvt_pk_bf16_f32 v{y+11}, v{tmp+14}, v{tmp+15}")
        wr = [f"ds_write_b128 v{vSW}, {V(y+8*gi,4)} offset:{self.soff(o, F, gi)}" for gi in range(2)]
        ef = ex[:2] + [x for p in zip(ex[2:], fm) for x in p] + fm[14:]
        pa, pb, pc = pos or (8, 22, 34)
        if defer is not None: defer.extend(wr); wr = []
        if cv:
            S = lambda n: (lambda: self.stamp(self.tcur, f"{n}{o}{F}"))
            v = merge(merge(merge((ef + rc)[skip:], [[S('c'), list(exc), S('d')]], pc), [[S('a'), list(exb), S('b')]], pb), [list(exa)], pa)
            z = []; k = 0
            for n, m in enumerate(cv):
                z.append(m)
                if n % 3 != 2: z.append(mc[k]); k += 1
                if n == 17: z += list(mid)
            return v + [S('e'), self.PC(), 's_waitcnt lgkmcnt(0)', S('f')] + list(pre) + [S('g')] + z + [self.PS(), S('h')] + wr
        ef = merge(merge(ef, [list(exb)], pb), [list(exa)], pa)
        r = rc[:2]; k = 0
        for n in range(2, 16):
            r.append(rc[n]); r.append(mc[k]); k += 1
            if mc[k].startswith('v_cvt'): r.append(mc[k]); k += 1
        return ef + merge(r + mc[k:], [list(exc)], 2) + wr
    def si16pk(self, y, tmp, o, F):
        K2 = "s[16:17]"
        ex = [f"v_exp_f32 v{tmp+i}, v{y+i}" for i in range(16)]
        fm = [f"v_pk_fma_f32 {V(tmp+i,2)}, {V(tmp+i,2)}, {K2}, {K2}" for i in range(0, 16, 2)]
        rc = [f"v_rcp_f32 v{tmp+i}, v{tmp+i}" for i in range(16)]
        ml = [f"v_pk_mul_f32 {V(tmp+i,2)}, {V(y+i,2)}, {V(tmp+i,2)}" for i in range(0, 16, 2)]
        cv = [f"v_cvt_pk_bf16_f32 v{y+8*(k//4)+k%4}, v{tmp+2*k}, v{tmp+2*k+1}" for k in range(8)]
        wr = [f"ds_write_b128 v{vSW}, {V(y+8*gi,4)} offset:{self.soff(o, F, gi)}" for gi in range(2)]
        return [f"s_mov_b32 s16, {sK2}", f"s_mov_b32 s17, {sK2}"] + merge(ex, fm, 3, 2) + merge(rc, ml, 3, 2) + cv + wr
    def glu_half_pk(self, c, F, half, acc=0, pk=None):
        K, K2 = "s[12:13]", "s[14:15]"
        a = R0 + acc + 8*half; b = a + 16; p = pk or a
        m1 = [f"v_pk_mul_f32 {V(b+i,2)}, {V(b+i,2)}, {K2}" for i in range(0, 8, 2)]
        ex = [f"v_exp_f32 v{b+i}, v{b+i}" for i in range(8)]
        fm = [f"v_pk_fma_f32 {V(b+i,2)}, {V(b+i,2)}, {K}, {K}" for i in range(0, 8, 2)]
        rc = [f"v_rcp_f32 v{b+i}, v{b+i}" for i in range(8)]
        m2 = [f"v_pk_mul_f32 {V(b+i,2)}, {V(a+i,2)}, {V(b+i,2)}" for i in range(0, 8, 2)]
        cv = [f"v_cvt_pk_bf16_f32 v{p+k}, v{b+2*k}, v{b+2*k+1}" for k in range(4)]
        return m1 + merge(ex, fm, 3, 2) + merge(rc, m2, 3, 2) + cv + [self.gwr(c, F, half, p)]
    def mix(self, ex, v, cap, base, g0=0):
        k = 0; c = lambda x: 8 if x.startswith(('v_exp', 'v_rcp')) else 4
        for g in range(g0, 32):
            room = cap - base(g)
            while k < len(v) and room >= c(v[k]):
                room -= c(v[k]); ex.setdefault(g, []).append(v[k]); k += 1
        return v[k:]
    def glu16(self, c, F, pk, cv=None, prio=None, side=(), at=0, step=1):
        a = R0; b = R0 + 16
        m1 = [f"v_mul_f32 v{b+i}, {sK2}, v{b+i}" for i in range(16)]
        ex = [f"v_exp_f32 v{b+i}, v{b+i}" for i in range(16)]
        fm = [f"v_fma_f32 v{b+i}, v{b+i}, {sK}, {sK}" for i in range(16)]
        rc = [f"v_rcp_f32 v{b+i}, v{b+i}" for i in range(16)]
        m2 = [f"v_mul_f32 v{b+i}, v{a+i}, v{b+i}" for i in range(16)]
        cp = [f"v_cvt_pk_bf16_f32 v{pk+k}, v{b+2*k}, v{b+2*k+1}" for k in range(8)]
        ef = ex[:2] + [x for p in zip(ex[2:], fm) for x in p] + fm[14:]
        wr = [self.gwr(c, F, h, pk + 4*h) for h in range(2)]
        if cv:
            z = lambda m, v: [x for p in zip(m, v) for x in p] + m[len(v):] + v[len(m):]
            n2 = self.o.get('zc', 2)
            v2 = merge(m2, cp[:n2], 5, 6)
            S = lambda n: (lambda: self.stamp(self.tcur, n))
            return [self.PC(), 's_waitcnt lgkmcnt(0)', S('z0')] + z(cv[:16], m1) + [prio, S('z1')] + merge(ef + rc, side, at, step) + [self.PC(), S('z2')] + z(cv[16:], v2) + [prio, S('z3')] + cp[n2:], wr
        r = rc[:2]
        for n in range(2, 16):
            r += [rc[n], m2[n-2]]
            if n >= 5 and n % 2: r.append(cp[(n-5)//2])
        return merge(m1 + ef + r + m2[14:] + cp[6:], side, at, step), wr
    def gflag(self, t, pub):
        def f():
            t.wait_op(*pub)
            t(f"s_mov_b64 exec, {sWM}")
            t(f"buffer_store_dword v{vFL}, off, {sWS}, s8 sc1")
            t("s_mov_b64 exec, -1")
        return f
    def PS(self): return f"s_setprio {self.o['prioS']}"
    def soff(self, o, F, gi): return o*16384 + F*2048 + gi*1024
    def rds(self, o, F, D, es): return [self.drd(o, F, gi, e, D) for e in es for gi in range(2)]
    def Y(self, t, c, o, F, exa=(), exb=(), exc=(), exc2=(), exd=(), ex0=(), at0=0, end=()):
        D = R0 + 32; Yv = R0 + 16; tmp = R0
        t(self.PY())
        self.run(t, merge((self.glu_half_pk if self.o.get('pk', 0) & 8 else self.glu_half)(c, F, 0), [list(ex0)], at0) + list(exa))
        self.stamp(t, f"gh{c}")
        self.run(t, merge(self.glu_half(c, F, 1), [self.rds(o, F, D, range(3))], 12) + list(exb))
        self.stamp(t, f"glu{c}")
        self.run(t, [self.PC()] + merge(self.cv(TT, D, Yv), [self.rds(o, F, D, (3, 4))], self.o.get('cvrd', 6)) + [self.PS()])
        self.stamp(t, f"cv{o}")
        self.run(t, self.si16(Yv, tmp, o, F, None, exc, exc2, exd) + list(end))
        self.stamp(t, f"si{o}")

    def Yc(self, t, c, o, F, exa=(), exr=(), exb=(), ex0=(), at0=0, exw=(), exm=(), end=()):
        D = [R0+x for x in (32, 36, 0, 16, 20,   40, 44, 4, 24, 28)]
        t(self.PY())
        self.run(t, merge(self.glu_half(c, F, 0), [list(ex0)], at0) + list(exa))
        self.stamp(t, f"gh{c}")
        self.run(t, merge(merge(self.glu_half(c, F, 1), [list(exb)], 30), [self.rds(o, F, D, range(3)) + list(exr)], 12) + list(exw))
        self.stamp(t, f"glu{c}")
        self.run(t, [self.PC()] + merge(merge(self.cv(TT, D, R0+48), [list(exm)], 26), [self.rds(o, F, D, (3, 4))], self.o.get('cvrd', 6)) + [self.PX()] + list(end))
        self.stamp(t, f"cv{o}")

    def korder(self, o):
        if o == 0 or not self.o.get('kord', 1): return list(range(16))
        first = 1 if o == 3 else 0
        return [s for s in range(16) if (s//2) % 2 == first] + [s for s in range(16) if (s//2) % 2 != first]
    def srd(self, o, p):
        s = self.korder(o)[p]
        return [f"ds_read_b64_tr_b16 {R(FR+4*(p%4)+2*u,2)}, v{vTR} offset:{o*16384 + s*1024 + u*256}" for u in range(2)]
    def pre_g2(self, o): return [self.srd(o, s) for s in range(4)]
    def mm2(self, o, p, j, acc):
        a = R(acc + 16*j, 16)
        return f"v_mfma_f32_32x32x16_bf16 {a}, {V(Wt(self.korder(o)[p],j),4)}, {R(FR+4*(p%4),4)}, {a if p else 0}"
    def out_ops(self, o, acc):
        P = TT; fl = self.o.get('stfl', 'sc1').replace('_', ' ')
        if o == 3 and 'stfl3' in self.o: fl = self.o['stfl3'].replace('_', ' ')
        cv = [[f"v_cvt_pk_bf16_f32 v{P+4*i+k}, v{R0+acc+8*i+2*k}, v{R0+acc+8*i+2*k+1}" for k in range(4)] for i in range(4)]
        wr = [f"ds_write_b128 v{vOW+i}, {V(P+4*i,4)}" for i in range(4)]
        rd = [f"ds_read_b128 {V(P+16+4*i,4)}, v{vOR} offset:{i*1024}" for i in range(4)]
        st = [f"buffer_store_dwordx4 {V(P+16+4*i,4)}, v{vOG}, {sO}, s{12+i} offen {fl}" for i in range(4)]
        so = [f"s_mov_b32 s{12+i}, {o*16384 + i*4096}" for i in range(4)]
        if self.o.get('cvtprio') and o < 2: cv = [["s_setprio 2"] + c + [f"s_setprio {self.o['prioU']}"] for c in cv]
        return cv, wr, rd, st, so
    def out_sched(self, o, acc):
        cv, wr, rd, st, so = self.out_ops(o, acc)
        if (self.o.get('nost', 0) >> o) & 1: st = [None]*4
        d = self.o.get('dense', 0)
        if d == 1:
            ex = {0: [so], 1: [cv[0]], 2: [wr[0]], 3: [cv[1]], 4: [cv[2]], 6: [wr[1]], 7: [cv[3]], 8: [wr[2]], 10: [wr[3]], 13: [None], 14: [rd],
                  18: [st[0]], 20: [st[1]], 22: [st[2]], 24: [st[3]]}
            return ex
        if d == 2:
            ex = {0: [so], 1: [cv[0]], 2: [cv[1]], 4: [wr[0], wr[1]], 5: [cv[2]], 6: [cv[3]], 8: [wr[2], wr[3]], 12: [rd],
                  16: [st[0]], 18: [st[1]], 20: [st[2]], 22: [st[3]]}
            return ex
        if d == 3:
            return {0: [so], 2: [cv[0]], 4: [wr[0]], 5: [cv[1]], 6: [cv[2]], 8: [wr[1]], 9: [cv[3]], 10: [wr[2]], 16: [wr[3]], 20: [rd],
                    24: [st[0]], 26: [st[1]], 28: [st[2]], 30: [st[3]]}
        seq = [so, cv[0], wr[0], cv[2], wr[1], cv[3], wr[2], None, wr[3], None, rd, None, st[0], st[1], st[2], st[3]]
        ex = {2*k: [op] for k, op in enumerate(seq)}
        ex[5] = [cv[1]]
        return ex
    def U(self, t, o, acc, extra={}, nxt=None, late=None):
        mf = []; fill = {}
        if late: fill[late[0]] = list(late[1])
        for s in range(16):
            mf += [self.mm2(o, s, 0, acc), self.mm2(o, s, 1, acc)]
            rd = self.srd(o, s+4) if s + 4 < 16 else (nxt[s-12] if nxt else None)
            g = 2*s + 1
            w = extra.get(2*s, [None])[0]
            if isinstance(w, str) and w.startswith('ds_write') and self.o.get('wskip', 1): g += 2
            if late and s + 4 >= 8: g = max(g, late[0] + (s - 4 + 1)//2 if s < 8 else g)
            if rd: fill.setdefault(g, []).append(rd)
        for g, ops in extra.items(): fill.setdefault(g, []).extend(ops)
        self.weave(t, mf, fill)

    def barrier(self, t, name, *handles, lds=True):
        t.wait_op(*handles)
        if lds: t.wait_lds()
        self.stamp(t, name + "<")
        t("s_barrier")
        self.stamp(t, name + ">")
        if name == self.o.get('from'): t.steady = True
        if name == self.o.get('to'): t.steady = False

    def fladdr(self):
        return [f"v_bfe_u32 v{vFL}, v{vSW}, 4, 3", f"s_mov_b32 {sT0}, {FB}", f"v_lshl_add_u32 v{vFL}, v{vFL}, 2, {sT0}"]
    def gfaddr(self, F):
        return ["s_lshl_b32 s8, s2, 7", f"s_lshl_b32 {sT0}, {sQ}, 3", f"s_add_u32 s8, s8, {sT0}", f"s_add_u32 s8, s8, {FLG + 4*F}"]
    def signal(self, t, e, *handles):
        def f():
            t.wait_op(*[h for x in handles for h in (x if isinstance(x, list) else [x])])
            t(f"s_mov_b64 exec, {sWM}")
            t(f"ds_write_b32 v{vFL}, v{vFL} offset:{32*e}")
            t("s_mov_b64 exec, -1")
            self.stamp(t, f"S{e}")
        return f
    def ready_ld(self): return "s_load_dwordx4 s[12:15], s[28:29], 0"
    def ready_chk(self, t, tmp):
        def f():
            lab = f"L_rdy{t.name}"
            t(f"s_mov_b32 {sT0}, 0x40000")
            t(f"{lab}l:")
            t("s_and_b64 s[12:13], s[12:13], s[14:15]")
            t("s_and_b32 s12, s12, s13")
            t(f"s_cbranch_scc0 {lab}s")
            t(f"{lab}:")
            t.slow += [f"{lab}s:", f"    buffer_load_dwordx4 {V(tmp,4)}, off, {sDBG}, 0 sc1", "    s_waitcnt vmcnt(0)"] + \
                      [f"    v_readfirstlane_b32 s{12+k}, v{tmp+k}" for k in range(4)] + \
                      [f"    s_sub_u32 {sT0}, {sT0}, 1", f"    s_cbranch_scc0 {lab}l", f"    s_branch {lab}"]
        return f
    def peek(self, e, tmp): return f"ds_read_b32 {tmp}, v{vFL} offset:{32*(e % 8)}"
    def await_(self, t, e, tmp, mask, up=False):
        def f():
            lab = f"L_w{t.name}{e}"
            self.stamp(t, f"W{e}<")
            if up: t("s_setprio 2")
            t(f"v_cmp_eq_u32 vcc, 0, {tmp}")
            t(f"s_and_b32 {sT0}, vcc_lo, {mask}")
            t(f"s_cbranch_scc1 {lab}s")
            t(f"{lab}:")
            if up: t(f"s_setprio {self.o['prioU']}")
            self.stamp(t, f"W{e}>")
            t.slow += [f"{lab}s:", "    " + self.peek(e, tmp), "    s_waitcnt lgkmcnt(0)", f"    v_cmp_eq_u32 vcc, 0, {tmp}", "    s_nop 0",
                       f"    s_and_b32 {sT0}, vcc_lo, {mask}", f"    s_cbranch_scc1 {lab}s", f"    s_branch {lab}"]
        return f
    def publish(self, t, F, acc, st=8):
        hs = []
        if self.o.get('nopub'): return hs
        for half in range(2):
            hs.append(t(f"buffer_store_dwordx4 {R(acc+st*half,4)}, v{vSW}, {sWS}, {sEX} offen offset:{F*2048 + half*1024} sc1"))
        return hs

    def finish(self, t):
        if self.o.get('probe') or self.stamps:
            self.stamp(t, "end0")
            t.wait_vm()
            self.stamp(t, "end1")
        if self.o.get('probe'):
            t("s_waitcnt lgkmcnt(0)")
            t("s_sub_u32 s96, s96, s98")
            t("s_lshl_b32 s96, s96, 4")
            if t.name != self.o.get('pgrp', 'L'): t("s_mov_b32 s96, 0")
            if 'pwg' in self.o:
                t(f"s_cmp_eq_u32 s2, {self.o['pwg']}")
                t("s_cselect_b32 s96, s96, 0")
            t("s_memrealtime s[98:99]")
            t("s_waitcnt lgkmcnt(0)")
            t("s_add_u32 s96, s96, s98")
            lab = f"L_spin{t.name}"
            t(lab + ":")
            t("s_memrealtime s[100:101]")
            t("s_waitcnt lgkmcnt(0)")
            t("s_sub_u32 s100, s100, s96")
            t("s_cmp_lt_i32 s100, 0")
            t(f"s_cbranch_scc1 {lab}")
        if self.stamps:
            t("s_memrealtime s[100:101]")
            t("s_waitcnt lgkmcnt(0)")
            t(f"s_lshl_b32 {sT0}, s2, 3"); t(f"s_add_u32 {sT0}, {sT0}, {sWAVE}"); t(f"s_lshl_b32 {sT0}, {sT0}, 7")
            t(f"v_mov_b32 {R(1)}, 0")
            for k, r in [(k, STAMP0+2*k) for k in range(t.nstamp)] + [(30, 98), (31, 100)]:
                t(f"v_mov_b32 {R(0)}, s{r}")
                t(f"buffer_store_dword {R(0)}, {R(1)}, {sWS}, {sT0} offen offset:{4*k}")
        t("s_endpgm")

    def ring2(self):
        r2 = {'s': R(80), 'p': R(81), 'x': R(82)}
        x1 = [[self.slot('x1', 2*i+j, r2) for j in range(2)] for i in range(2)]
        x2 = [[self.slot('x2', 2*i+j, r2) for j in range(2)] for i in range(2)]
        s1 = [[(sSQ, 16384 + 2048*i + 1024*j, R(80)) for j in range(2)] for i in range(2)]
        sp = [self.slot('p', j, r2) for j in range(2)]
        top = [(sSQ, (2+j)*16384 + 3072, R(80)) for j in range(2)]
        return x1 + [sp, top] + s1 + x2 + s1 + [top] + x1 + [sp] + x2
    def pubops(self, t, F, hs, r=32, d=4):
        rd = [f"ds_read_b128 {R(r+d*half,4)}, v{vGW} offset:{F*GSZ + 32*half}" for half in range(2)]
        st = [lambda half=half: hs.append(t(f"buffer_store_dwordx4 {R(r+d*half,4)}, v{vSW}, {sWS}, {sEX} offen offset:{F*2048 + half*1024} sc1")) for half in range(2)]
        return rd, st
    def path_L(self, t):
        O = self.o; self.tcur = t
        regs = {'s': R(80), 'g': R(81), 'x': R(82)}
        ring = [[self.slot(k, 2*i+j, regs) for j in range(2)] for k in ('s', 'g', 'x2') for i in range(2)]
        D = len(ring)
        pairs = [ring[s % D] for s in range(16)]
        self.tbuild2(t)
        self.stamp(t, "tb")
        self.run(t, self.tload(TT, R(20), R(21)))
        pend = {s: self.wdma(t, 1, s, pairs[s]) for s in range(O['pre'])}
        self.stamp(t, "wiss")
        t(self.PC())
        self.barrier(t, "B0", *self.x01[t.name])
        self.g1p(t, pairs, pend, D, {O.get('b1', 38): [lambda: self.barrier(t, "B1", lds=False)]})
        self.stamp(t, "g1p")
        t(self.PY())
        hs = [self.glu_half(0, 0, 0, 32), self.glu_half(0, 0, 1, 32), self.glu_half(1, 0, 0), self.glu_half(1, 0, 1)]
        self.run(t, [h[:-1] for h in hs])
        self.run(t, self.gfaddr(0))
        t(f"s_add_u32 {sT1}, {sXROW}, {2*16384}")
        t(f"v_add_u32 {R(73)}, {sT1}, v{vXL}")
        t(f"v_add_u32 {R(74)}, 16384, {R(73)}")
        t(f"s_sub_u32 s18, {sT1}, {sSQ}"); t("s_add_u32 s18, s18, 16384")
        t(f"s_bfe_u32 {sT0}, s2, 0x40003")
        t(f"s_lshl_b32 {sT0}, {sT0}, 13")
        t(f"s_lshl_b32 {sT1}, {sQ}, 11")
        t(f"s_add_u32 {sT0}, {sT0}, {sT1}")
        t(f"s_add_u32 {sT0}, {sT0}, {W2T}")
        t(f"v_lshl_add_u32 {R(72)}, v{vXL}, 1, {sT0}")
        t(f"s_lshl_b32 {sT1}, {sSQ}, 1"); t(f"s_sub_u32 s11, {sT0}, {sT1}")
        self.run(t, self.fladdr())
        self.run(t, self.wrapaddr())
        a, b, c = R(4), R(5), R(6)
        self.run(t, [f"v_subrev_u32 {a}, {sSQ}, v{vSW}", f"v_lshrrev_b32 {b}, 3, {a}", f"v_xor_b32 {c}, {a}, {b}",
                     f"v_and_b32 {c}, 0x70, {c}", f"v_and_b32 {b}, 0x70, {b}", f"v_lshl_add_u32 {c}, {b}, 5, {c}", f"s_lshl_b32 {sT2}, {sQ}, 7", f"v_add_u32 v{vOG}, {sT2}, {c}",
                     f"v_lshrrev_b32 {b}, 5, {a}", f"v_and_b32 {b}, 16, {b}", f"v_xor_b32 {b}, {a}, {b}", f"v_and_b32 {b}, 0x70, {b}", f"v_and_b32 {a}, 0x1f0, {a}",
                     f"v_lshl_add_u32 {a}, {a}, 3, {b}", f"s_add_u32 {sT1}, {sXQ}, {XB + XSZ}", f"v_add_u32 {a}, {sT1}, {a}", f"v_xor_b32 v{vOW+3}, 96, {a}",
                     f"s_sub_u32 s9, {sT1}, {sSQ}",
                     f"s_mul_i32 s10, {sQ}, {32768-4096}", f"s_add_u32 s10, s10, {W2T - SB}"])
        self.stamp(t, "glu1")
        Dd, Yv, tm = R0 + 32, R0 + 16, R0
        PK = f"v{vXL}"
        t(self.PS())
        if O.get('rdy', 0) == 0: t(self.ready_ld())
        self.barrier(t, "B1b")
        x2 = []; x3 = []
        x3at = O.get('x3at', 0); pfat = O.get('pfat', 0)
        def x3q(q, a=R(74)):
            t(f"s_add_u32 m0, {sXQ}, {XB + q*32}")
            x3.append(t(f"buffer_load_dwordx4 {a}, {sX}, 0 offen offset:{q*1024} nt lds"))
        for q in range(4):
            t(f"s_add_u32 m0, {sXQ}, {XB + 2*XSZ + q*32}")
            x2.append(t(f"buffer_load_dwordx4 {R(73)}, {sX}, 0 offen offset:{q*1024} nt lds"))
        if O.get('rdy', 0) == 0: t("s_waitcnt lgkmcnt(0)")
        self.barrier(t, "B2")
        self.run(t, [h[-1] for h in hs[:2]])
        if x3at == 0: x3q(0); x3q(1)
        self.run(t, [h[-1] for h in hs[2:]])
        if x3at == 0: x3q(2); x3q(3)
        Dd = [R0+x for x in (4, 12, 16, 20, 24,   36, 44, 28, 64, 68)]; Y0 = R0 + 48; T0 = R0 + 32
        self.run(t, self.rds(0, 0, Dd, range(5)))
        self.run(t, [self.PC()] + self.cv(TT, Dd, Y0) + [self.PS()])
        self.stamp(t, "cv0")
        t(self.ready_ld())
        s0 = [x for x in self.si16(Y0, T0, 0, 0) if x]; e0 = O.get('e0L', 0)
        pub = []
        pfa = lambda a: [f"s_mov_b32 m0, {sSPQ}", f"buffer_load_dword {a}, {sWS}, 0 offen sc1 lds"]
        pL = O.get('pubL', 1); xg = O.get('x3g', 4)
        prd, pst = self.pubops(t, 0, pub, 52, 8) if pL >= 2 else self.pubops(t, 0, pub, FR if pL else 0)
        self.run(t, [None if pL else prd] + merge(s0[:e0], [lambda q=q: x3q(q) for q in range(4)] if xg < 0 else [], 0, max(1, e0//4)))
        self.stamp(t, "si0")
        t(self.PX())
        t("s_waitcnt lgkmcnt(0)")
        self.ready_chk(t, R0+8)()
        pg = O.get('pfg', 26)
        self.run(t, [None if pL else pst, self.signal(t, 3, x2), self.peek(3, PK), self.await_(t, 3, PK, 0x0f)])
        self.run(t, self.pre_g1(2))
        ex = {pg: [f"v_lshl_add_u32 {PK}, v{vSW}, 1, s11"] + pfa(PK)}
        if xg >= 0:
            ex[0] = [f"v_add_u32 {PK}, s18, v{vSW}", "s_mov_b32 exec_lo, 0", f"v_xor_b32 {PK}, 16, {PK}", "s_mov_b32 exec_lo, -1"]
            for q in range(4): ex[xg + 2*q] = [lambda q=q: x3q(q, PK)]
        if pL == 1: ex.update({27: [prd], 30: [pst[0]], 31: [pst[1]]})
        self.g1(t, 2, ex)
        self.stamp(t, "g1_2")
        t(self.PY())
        g2, w2g = self.glu16(2, 0, T0)
        v = s0[e0:-2] + g2; n = len(v)
        v = merge(v, [[f"s_setprio {O.get('prioV2', 1)}", self.signal(t, 4, x3)], [self.peek(4, PK)] + (prd if pL == 3 else []), [self.await_(t, 4, PK, 0x0f)] + self.pre_g1(3) + (prd if pL == 2 else []) + (pst if pL == 3 else [])], n - O.get('s4', 48), 14)
        self.run(t, v + [self.PX()])
        self.stamp(t, "glu2")
        def w2(k):
            o = [f"buffer_load_dwordx4 {V(WW+4*k,4)}, v{vSW}, {sWS}, s10 offen offset:{1024*(k % 4)} sc1"]
            return o + (["s_add_u32 s10, s10, 4096"] if k % 4 == 3 else [])
        DW = Wt(11, 0)
        D1 = [R0+32, R0+36, DW, DW+8, DW+16,   R0+40, R0+44, DW+4, DW+12, DW+20]; r1 = self.rds(1, 0, D1, range(5))
        leave = [f"s_cmp_eq_u32 {sJ}, 125", "s_cbranch_scc1 L_end"]
        ex = {0: [w2g[0]], 4: [w2g[1]], 8: [s0[-2]], 12: [s0[-1]], O.get('gfL', 5): [self.gflag(t, pub)], max(17, O.get('gfL', 5) + 2): leave, 13: [self.signal(t, 2)],
              25: [r1[:4]], 27: [r1[4:8]], 29: [r1[8:]]}
        gl = [2, 6, 9, 10, 14, 16, 18, 20, 22, 24, 26, 28, 30, 31]
        if pL == 2:
            del ex[O.get('gfL', 5)], ex[17]
            gl = [2, 5, 6, 9, 10, 14, 16, 18, 20, 22, 24, 26, 28]; ex.update({30: [pst[0]], 31: [pst[1]]})
        gl = sorted(gl + [19, 23, 15][:O.get('w2x', 0)])
        for k, g in enumerate(gl): ex.setdefault(g, []).append(w2(k))
        nw = len(gl); na = nw + O.get('w2a', 4); nb = min(22, na + O.get('w2b', 4))
        self.g1(t, 3, ex, wskip=True)
        self.stamp(t, "g1_3")
        pl = f"s_setprio {O.get('prioL3', 1)}"
        g3, w3g = self.glu16(3, 0, R0, self.cv(TT, D1, R0+48), pl, [w2(k) for k in range(nw, na)], 4, 10)
        self.run(t, g3 + w3g + ([self.gflag(t, pub), leave] if pL == 2 else []))
        self.stamp(t, "glu3")
        self.tcur = t
        rr = self.rds(2, 0, DW, range(5))
        self.run(t, merge(self.si16(R0+48, R0+32, 1, 0, self.cv(TT, DW, R0+16), [], rr[:5] + [self.peek(2, PK)], rr[5:],
                          pos=(0, O.get('pb', 20), O.get('pc', 30)), pre=[self.await_(t, 2, PK, 0xff)] + self.pre_g2(0)), [w2(k) for k in range(na, nb)], 3, 11))
        self.stamp(t, "si1")
        t(self.PX())
        up = O.get('cvtprio')
        ex = {1: [f"s_setprio {O['prioU']}"], 5: [self.signal(t, 5)],
              30: [f"v_xor_b32 v{vOW+i}, {96 ^ (32*i)}, v{vOW+3}" for i in range(3)] + [f"v_add_u32 v{vOR}, s9, v{vSW}"]}
        lg_ = sorted(list(range(0, 20, 2)) + [3, 7, 11, 15, 1, 9, 13, 17][:22 - nb])
        for k, g in zip(range(nb, 32), lg_): ex.setdefault(g, []).append(w2(k))
        s2 = self.si16(R0+16, R0, 2, 0); v2 = [x for x in s2[:-2] if isinstance(x, str)]
        k = 0; cap = O.get('mix', 0)
        for g in range(32):
            room = cap - (12 if g in lg_ else 0) - (20 if g % 2 or g == 22 else 0)
            while k < len(v2) and room >= (8 if v2[k].startswith(('v_exp', 'v_rcp')) else 4):
                room -= 8 if v2[k].startswith(('v_exp', 'v_rcp')) else 4
                ex.setdefault(g, []).append(v2[k]); k += 1
        ex.setdefault(19, []).append(self.peek(5, PK)); ex.setdefault(22, []).insert(0, self.await_(t, 5, PK, 0x0f, up))
        self.U(t, 0, 32, ex, self.pre_g2(1))
        self.stamp(t, "u0")
        t(f"s_setprio {O.get('prioS2', 1)}")
        self.run(t, v2[k:] + s2[-2:])
        self.stamp(t, "si2")
        lg = O.get('late', 13)
        for o in (1, 2, 3):
            O['prioU'] = O.get(f'prioU{o}', O['prioU']); up = O['cvtprio'] = O['prioU'] < 2
            t(f"s_setprio {O['prioU']}")
            ex = self.out_sched(o-1, 32*(o % 2))
            if o == 1: ex.setdefault(3, []).append(self.signal(t, 0))
            em = (5, 0, 1)[o-1]
            ex.setdefault(lg - 2, []).append(self.peek(em, PK))
            if o < 3:
                en, mk = ((0, 0x0f), (6, 0xf0))[o-1]
                ex.setdefault(21, []).append(self.peek(en, PK))
                ex.setdefault(23, []).append(self.await_(t, en, PK, mk, up))
            self.U(t, o, 32*((o+1) % 2), ex, self.pre_g2(o+1) if o < 3 else None, late=(lg, [self.await_(t, 8 + em, PK, 0xf0, up)]))
            self.stamp(t, f"u{o}")
        cv, wr, rd, st, so = self.out_ops(3, 0)
        self.run(t, [so, cv[0], wr[0], cv[1], wr[1], cv[2], wr[2], cv[3], wr[3], rd, st])
        self.finish(t)

    def path_F(self, t):
        O = self.o; self.tcur = t
        regs = {'s': R(80), 'g': R(81), 'x': R(82)}
        ring = [[self.slot(k, 2*i+j, regs, 1) for j in range(2)] for k in ('s', 'g') for i in range(2)]
        D = len(ring)
        pairs = [ring[s % D] for s in range(16)]
        b, c, e, f = R(48), R(49), R(50), R(51)
        t(f"v_subrev_u32 {b}, {sSQ}, v{vSW}")
        t(f"v_bfe_u32 {c}, {b}, 4, 2")
        t(f"v_lshrrev_b32 {b}, 6, {b}")
        t(f"s_add_u32 {sT0}, {sSQ}, {2*16384}")
        t(f"s_mov_b32 {sT1}, 16384")
        self.taddr(t, f"v{vXL}", R(53), b, c, e, f)
        self.barrier(t, "B0", *self.x01[t.name])
        tl0 = self.tload(TT, R(20), R(21))
        for k in range(0, 18, 3): self.run(t, tl0[k:k+3] + ["s_waitcnt lgkmcnt(0)"])
        self.barrier(t, "B1")
        pend = {s: self.wdma(t, 1, s, pairs[s]) for s in range(D)}
        self.stamp(t, "wiss")
        t(f"s_setprio {O['prioP']}")
        self.g1p(t, pairs, pend, D, {46: [lambda: self.barrier(t, "B1b", lds=False)], O.get('b2', 57): [lambda: self.barrier(t, "B2")], 60: [self.fladdr()], 61: [self.gfaddr(1)]})
        self.stamp(t, "g1p")
        PK = f"v{vTR}"
        t(self.PY())
        self.run(t, self.glu_half(0, 1, 0, 32, R0+72) + self.glu_half(0, 1, 1, 32, R0+76))
        pub = []; Y0 = R0 + 48; T0 = R0 + 32
        s0 = [x for x in self.si16(Y0, T0, 0, 1) if x]; e0 = O.get('e0F', 32)
        pb = lambda: pub.extend(self.publish(t, 1, 72, 4)); pf_ = O.get('pubF', 1)
        self.Yc(t, 1, 0, 1, exm=[self.peek(3, PK)], exb=[pb] if pf_ == 0 else [],
                end=[self.PS()] + merge(s0[:e0], [[pb if pf_ == 1 else None, self.await_(t, 3, PK, 0x0f)] + self.pre_g1(2)], max(0, e0 - 16)) + [self.PX()])
        self.stamp(t, "si0")
        leave = [f"s_cmp_eq_u32 {sJ}, 125", "s_cbranch_scc1 L_end"]
        ex = {6: [self.wrapaddr()]}
        if pf_ == 2:
            prd, pst = self.pubops(t, 1, pub, FR); ex.update({27: [prd], 30: [pst[0]], 31: [pst[1]]})
        if pf_ == 3: prd, pst = self.pubops(t, 1, pub, 52, 8)
        self.g1(t, 2, ex)
        self.stamp(t, "g1_2")
        t(self.PY())
        g2, w2g = self.glu16(2, 1, T0)
        v = s0[e0:-2] + g2; n = len(v)
        self.run(t, merge(v, [[f"s_setprio {O.get('prioV2', 1)}", self.peek(4, PK)] + ([self.gflag(t, pub), leave] if pf_ < 2 else []), [self.await_(t, 4, PK, 0x0f)] + self.pre_g1(3) + (prd if pf_ == 3 else [])], n - 34, 14) + [self.PX()])
        self.stamp(t, "glu2")
        G4L, G4F = WW + 116, WW + 36
        poll = [f"s_add_u32 s9, s8, 124", "s_load_dwordx2 s[10:11], s[24:25], s9"]
        TL = WW; DA = WW + 36; DB = WW + 76
        D1 = [R0+32, R0+36, WW+44, WW+52, WW+60,   R0+40, R0+44, WW+48, WW+56, WW+64]; r1 = self.rds(1, 1, D1, range(5))
        tl = self.tload(TL, f"v{vXL}", R(83))
        ex = {0: [w2g[0]], 4: [w2g[1]], 8: [s0[-2]], 12: [s0[-1]], 25: [self.signal(t, 2)],
              1: [f"v_add_u32 {R(83)}, 16384, v{vXL}", f"s_mov_b32 {sT3}, 0x40000", f"s_lshr_b32 {sT1}, s0, 4"], O.get('pollat', 14): [poll]}
        if pf_ == 2: ex[5] = [self.gflag(t, pub)]; ex[9] = leave
        for k, g in enumerate((10, 16, 18, 20, 22)): ex.setdefault(g, []).append(tl[4*k:4*k+4])
        ex[24] = [r1[:4]]; ex[27] = [r1[4:8]]; ex[29] = [r1[8:]]
        def check():
            t("s_waitcnt lgkmcnt(0)")
            t("L_poll:")
            t("s_min_u32 s10, s10, s11")
            t("s_cmp_eq_u32 s10, 0")
            t("s_cbranch_scc1 L_again")
            t("L_got:")
            t.slow += ["L_again:", f"    buffer_load_dwordx2 {V(G4F,2)}, off, {sWS}, s9 sc1", "    s_waitcnt vmcnt(0)",
                       f"    v_readfirstlane_b32 s10, v{G4F}", f"    v_readfirstlane_b32 s11, v{G4F+1}",
                       f"    s_sub_u32 {sT3}, {sT3}, 1", "    s_cbranch_scc0 L_poll", "    s_branch L_got"]
            t(f"s_add_u32 s9, {sEX}, 16384")
            self.stamp(t, "poll")
        g4ld = [f"buffer_load_dwordx4 {V((G4L, G4F)[k//2]+4*(k%2),4)}, v{vSW}, {sWS}, s9 offen offset:{k*1024} sc1" for k in (2, 3, 0, 1)]
        late = O.get('lateG4', pf_ == 3)
        if pf_ == 3: ex.update({5: [pst[0]], 9: [pst[1]], 30: [self.gflag(t, pub)], 31: leave})
        if late: del ex[O.get('pollat', 14)]
        else:
            ex.setdefault(26, []).append(check)
            for k, g in enumerate((28, 30, 31)): ex.setdefault(g, []).append(g4ld[k])
        self.g1(t, 3, ex, wskip=True)
        self.stamp(t, "g1_3")
        g3, w3g = self.glu16(3, 1, R0, self.cv(TT, D1, R0+48), f"s_setprio {O.get('prioG3', 0)}", [poll] if late else [g4ld[3]], O.get('pl', 40) if late else 4)
        self.run(t, g3 + ([check] if late else []) + w3g)
        self.stamp(t, "glu3")
        t(f"s_setprio {O.get('prioF1', 1)}")
        YA, YB = R0 + 64, R0 + 48
        TM = R0 + 16
        rd = lambda o, F, D: (self.rds(o, F, D, range(5))[:5], self.rds(o, F, D, range(5))[5:])
        P = (O.get('pa', 8), O.get('pb', 20), O.get('pc', 30))
        gF = [self.gwr(4, 1, 0, G4F), self.gwr(4, 1, 1, G4F+4)]
        gL = [self.gwr(4, 0, 0, G4L), self.gwr(4, 0, 1, G4L+4)]
        st1 = self.si16(YB, TM, 1, 1, self.cv(TT, DB, YA), [], *rd(2, 1, DB), pos=P, pre=[] if late else gF) + [self.signal(t, 5)]
        self.run(t, merge(st1, g4ld if late else [], O.get('g4a', 2), O.get('g4s', 8)))
        b, c = rd(3, 1, DA)
        self.run(t, self.si16(YA, TM, 2, 1, self.cv(TT, DA, YB), gF if late else [], b, c + [self.peek(5, PK)], pos=(14, 32, 37) if late else P,
                              pre=[self.await_(t, 5, PK, sT1)] + gL) + [self.signal(t, 0)])
        self.run(t, self.si16(YB, TM, 3, 1, self.cv(TL, DB, YA), [], *rd(3, 0, DB), pos=P) + [self.signal(t, 6)])
        self.stamp(t, "c3F")
        self.run(t, self.si16(YA, TM, 3, 0) + [self.signal(t, 1)])
        self.finish(t)

    def build(self):
        orig = asmlib.Trace.__call__
        o = self.o
        def call(tr, text, orig=orig):
            d = o.get('drop' + getattr(tr, 'name', ''))
            if d and getattr(tr, 'steady', False) and re.search(d, text): return asmlib.Ins('s_nop 0')
            return orig(tr, text)
        asmlib.Trace.__call__ = call
        try: return self.build2()
        finally: asmlib.Trace.__call__ = orig
    def build2(self):
        t = Trace()
        self.prologue(t)
        t(f"s_cmp_ge_u32 {sWAVE}, 4")
        t("s_cbranch_scc1 L_F")
        tl = Trace(t); tl.nstamp = t.nstamp; tl.stamp_names = list(t.stamp_names); tl.name = 'L'; tl.slow = []; tl.vm = list(self.vm0['L']); self.dwh = self.dwh2['L']
        self.path_L(tl)
        tf = Trace(t); tf.nstamp = t.nstamp; tf.stamp_names = list(t.stamp_names); tf.name = 'F'; tf.slow = []; tf.vm = list(self.vm0['F']); self.dwh = None
        self.path_F(tf)
        self.names = {'L': tl.stamp_names, 'F': tf.stamp_names}
        head = open('cdna_kernels/' + NAME + '.s.ref').read().split('\n')
        hdr = [x for x in head if x.startswith(';') and '@launch' not in x]
        s = '\n'.join(hdr) + f"\n; @launch grid=({NWG},1,1) block=(512,1,1) lds={LDS}\n"
        s += f""".amdgcn_target "amdgcn-amd-amdhsa--gfx950"
.text
.globl {NAME}_kernel
.p2align 8
.type {NAME}_kernel,@function
{NAME}_kernel:
"""
        s += '\n'.join(t.out) + '\n' + '\n'.join(tl.out + tl.slow) + '\nL_F:\n' + '\n'.join(tf.out + tf.slow) + helper(self.stamps) + '\nL_end:\n    s_endpgm\nL_code_end:\n'
        s += f""".section .rodata,"a"
.p2align 6
.amdhsa_kernel {NAME}_kernel
  .amdhsa_next_free_vgpr 256
  .amdhsa_next_free_sgpr 102
  .amdhsa_accum_offset 256
  .amdhsa_group_segment_fixed_size 0
  .amdhsa_kernarg_size 56
  .amdhsa_user_sgpr_count 2
  .amdhsa_user_sgpr_kernarg_segment_ptr 1
  .amdhsa_system_sgpr_workgroup_id_x 1
.end_amdhsa_kernel
"""
        return s

SETS = {
 'x': ['start', 'karg', 'B0>', 'g1p', 'B2>', 'W3>', 'g1_2', 'glu2', 'g1_3', 'glu3', 'si1', 'u0', 'u1', 'u2', 'u3', 'end1'],
 'all': ['start', 'B2>', 'W3>', 'si0', 'g1_2', 'glu2', 'g1_3', 'glu3', 'si1', 'u0', 'si2', 'W13<', 'W13>', 'u1', 'c3F', 'S1', 'W8<', 'W8>', 'u2', 'W9<', 'W9>', 'u3', 'end0', 'end1'],
 'fine': ['start', 'B2>', 'g1_3', 'z0', 'z1', 'z2', 'z3', 'glu3', 'si1', 'u0', 'end1'] + [x+'10' for x in 'abcdegh'] + [x+'11' for x in 'abcdegh'],
 'head': ["start", "karg", "xiss", "tb", "wiss", "B0<", "B0>", "B1>", "k0", "k7", "g1p", "gh1", "glu1", "cv0", "si0", "B1b>", "B2<", "B2>", "W3>", "end1"],
 'mid': ["start", "B2>", "cv0", "W3>", "gh1", "glu1", "si0", "g1_2", "gh2", "glu2", "cv1", "S4", "W12<", "W12>", "S2", "S6", "W2>", "W6<", "W6>", "g1_3", "glu3", "si1", "si2", "S7", "end1"],
 'tail': ["start", "B2>", "g1_3", "glu3", "si1", "si2", "W7<", "W7>", "S7", "S5", "W5<", "W5>", "c3F", "u0", "u1", "u2", "u3", "S0", "S1", "W0<", "W0>", "W1<", "W1>", "end0", "end1"],
 'min': ["start", "B2>", "W3>", "g1_2", "g1_3", "u0", "u3", "end1"],
}
def emit(name, opts, sset=None, d='gen'):
    o = dict(opts)
    if sset: o['only'] = SETS[sset]
    g = Gen(stamps=bool(sset), opts=o)
    open(f'code/{d}/{name}.s', 'w').write(g.build())
    if sset: json.dump(g.names, open(f'code/{d}/{name}.json', 'w'))

BASE = {'pf': 3, 'pre': 4, 'cvtprio': 0, 'prioU': 2, 'prioG3': 1, 'prioS2': 0, 'prioU1': 2, 'prioF1': 2, 'g4in': 1, 'n2': 40, 'x3at': 1, 'rdy': 1, 'early1': 20, 'chores': 0, 'e0L': 32, 'e0F': 48, 'pubF': 1, 'pubL': 1, 'x3g': -1, 'pfg': 16, 'prioL3': 3, 'stfl': 'sc1_nt', 'mix': 32, 'dense': 3, 'fast0': 1, 'pfat': 1, 'pk': 1, 'w12': 12, 'b4F': 16, 'w2s': 3}
if __name__ == "__main__":
    g = Gen(opts=BASE); open('cdna_kernels/' + NAME + '.s', 'w').write(g.build())
    for ss in SETS: emit('d_' + ss, BASE, ss)
```

```python
import re

def regs_of(tok):
    tok = tok.strip().lstrip('-')
    m = re.fullmatch(r'([vs])\[(\d+):(\d+)\]', tok)
    if m: return {(m.group(1), i) for i in range(int(m.group(2)), int(m.group(3)) + 1)}
    m = re.fullmatch(r'([vs])(\d+)', tok)
    if m: return {(m.group(1), int(m.group(2)))}
    if tok in ('vcc', 'vcc_lo'): return {('s', 'vcc')}
    if tok == 'm0': return {('s', 'm0')}
    if tok in ('exec', 'exec_lo'): return {('s', 'exec')}
    return set()

TRANS = ('v_exp_', 'v_rcp_', 'v_log_', 'v_rsq_', 'v_sqrt_')

class Ins:
    def __init__(self, text, tag=None):
        self.text = text
        self.tag = tag
        t = text.split(';')[0].strip()
        self.is_label = t.endswith(':') or t.startswith('.') or t == ''
        self.mn = t.split()[0] if t and not self.is_label else ''
        rest = t[len(self.mn):].strip()
        ops = [o.strip() for o in rest.split(',')] if rest else []
        if ops:
            ops[-1:] = ops[-1].split()
        self.ops = ops
        mn = self.mn
        self.defs, self.uses = set(), set()
        self.kind = 'other'
        self.passes = 0
        if mn.startswith('v_mfma'):
            self.kind = 'mfma'
            self.passes = 8 if '32x32x16' in mn else (4 if '16x16x32' in mn else 2)
            self.defs = regs_of(ops[0]); self.srcA = regs_of(ops[1]); self.srcB = regs_of(ops[2]); self.srcC = regs_of(ops[3])
            self.uses = self.srcA | self.srcB | self.srcC
        elif mn.startswith('v_'):
            self.kind = 'valu'
            self.defs = regs_of(ops[0])
            for o in ops[1:]: self.uses |= regs_of(o)
            if mn.startswith(('v_fmac', 'v_permlane')): self.uses |= self.defs
            if mn.startswith('v_permlane'): self.defs |= regs_of(ops[1])
        elif mn.startswith('ds_read'):
            self.kind = 'ds'
            self.defs = regs_of(ops[0]); self.uses = regs_of(ops[1])
        elif mn.startswith('ds_'):
            self.kind = 'ds'
            for o in ops: self.uses |= regs_of(o)
        elif mn.startswith(('buffer_load', 'global_load')):
            self.kind = 'vm'
            if 'lds' in ops:
                for o in ops: self.uses |= regs_of(o)
                self.uses |= {('s', 'm0')}
            else:
                self.defs = regs_of(ops[0])
                for o in ops[1:]: self.uses |= regs_of(o)
        elif mn.startswith(('buffer_', 'global_')):
            self.kind = 'vm'
            for o in ops: self.uses |= regs_of(o)
            self.wide_store = 'x4' in mn or 'x3' in mn
            self.data = regs_of(ops[0])
        elif mn.startswith('s_'):
            self.kind = 'salu'
            if mn.startswith(('s_cmp', 's_waitcnt', 's_barrier', 's_nop', 's_branch', 's_cbranch', 's_setprio', 's_endpgm', 's_setpc', 's_sleep')):
                for o in ops: self.uses |= regs_of(o)
            else:
                if ops: self.defs = regs_of(ops[0])
                for o in ops[1:]: self.uses |= regs_of(o)
        self.trans = mn.startswith(TRANS)

class Trace:
    def __init__(self, parent=None):
        self.out = []
        if parent is None:
            self.hist = []
            self.state = 0
            self.ptime = 0
            self.mfree = 0
            self.lds = []
            self.vm = []
        else:
            self.hist = list(parent.hist); self.state = parent.state
            self.ptime = parent.ptime; self.mfree = parent.mfree
            self.lds = list(parent.lds); self.vm = list(parent.vm)
        self.nnop = 0
    def raw(self, text):
        self.out.append(text)
    def _push(self, ins):
        self.out.append('    ' + ins.text)
        n = 1
        if ins.mn == 's_nop': n = int(ins.ops[0]) + 1
        if ins.kind == 'mfma':
            self.ptime = max(self.ptime, self.mfree)
            self.mfree = self.ptime + ins.passes
        ins.ptime = self.ptime
        self.ptime += n
        self.hist.append((ins, self.state))
        self.state += n
        if len(self.hist) > 40: self.hist = self.hist[-40:]
    def _wait(self, lg=None, vm=None):
        parts = []
        if vm is not None:
            vm = min(vm, 62); parts.append(f'vmcnt({vm})'); self.vm = self.vm[len(self.vm) - vm:] if vm else []
        if lg is not None:
            lg = min(lg, 14); parts.append(f'lgkmcnt({lg})'); self.lds = self.lds[len(self.lds) - lg:] if lg else []
        self._push(Ins('s_waitcnt ' + ' '.join(parts)))
    def wait_op(self, *handles):
        lg = vm = None
        for h in handles:
            if h in self.lds:
                n = len(self.lds) - 1 - self.lds.index(h); lg = n if lg is None else min(lg, n)
            if h in self.vm:
                n = len(self.vm) - 1 - self.vm.index(h); vm = n if vm is None else min(vm, n)
        if lg is not None or vm is not None: self._wait(lg, vm)
    def prewait(self, *texts):
        touched = set()
        for x in texts:
            i = Ins(x); touched |= i.defs | i.uses
        need = [h for h in self.lds + self.vm if h.defs & touched]
        if need: self.wait_op(*need)
    def wait_lds(self):
        if self.lds: self._wait(lg=0)
    def wait_vm(self):
        if self.vm: self._wait(vm=0)
    def __call__(self, text):
        ins = Ins(text)
        if ins.is_label:
            self.out.append(text); return ins
        touched = ins.defs | ins.uses
        need = [h for h in self.lds + self.vm if h.defs & touched]
        if ins.kind == 'ds':
            need = [h for h in need if not (h.kind == 'ds' and not (h.defs & ins.uses))]
        if need: self.wait_op(*need)
        req = 0
        for p, st in self.hist:
            have = self.state - st - (int(p.ops[0]) + 1 if p.mn == 's_nop' else 1)
            if p.kind == 'mfma' and ins.kind in ('valu', 'mfma') and p.passes >= 4:
                now = max(self.ptime, self.mfree) if ins.kind == 'mfma' else self.ptime
                have = max(have, now - p.ptime - 1)
            w = self.hazard(p, ins)
            if w > have: req = max(req, w - have)
        while req > 0:
            k = min(req, 16)
            self._push(Ins(f's_nop {k-1}')); self.nnop += 1
            req -= k
        self._push(ins)
        if ins.kind == 'ds': self.lds.append(ins)
        if ins.mn.startswith('ds_write'): self.lastw = ins
        if ins.kind == 'vm': self.vm.append(ins)
        if ins.mn == 's_waitcnt':
            m = re.search(r'lgkmcnt\((\d+)\)', text)
            if m:
                n = int(m.group(1)); self.lds = self.lds[len(self.lds) - n:] if n and len(self.lds) > n else ([] if n == 0 else self.lds)
            m = re.search(r'vmcnt\((\d+)\)', text)
            if m:
                n = int(m.group(1)); self.vm = self.vm[len(self.vm) - n:] if n and len(self.vm) > n else ([] if n == 0 else self.vm)
        return ins
    @staticmethod
    def hazard(p, c):
        w = 0
        vd = {r for r in p.defs if r[0] == 'v'}
        sd = {r for r in p.defs if r[0] == 's'}
        if p.kind == 'valu':
            if c.kind == 'mfma' and vd & c.uses: w = max(w, 2)
            if p.trans and c.kind in ('valu', 'ds', 'vm') and vd & c.uses: w = max(w, 1)
            if c.mn.startswith(('v_readfirstlane', 'v_readlane')) and vd & c.uses: w = max(w, 1)
            if c.mn.startswith('v_permlane') and vd & c.uses: w = max(w, 2)
            if 'dpp' in c.text and vd & c.uses: w = max(w, 2)
            if sd & c.uses:
                if c.kind == 'vm': w = max(w, 5)
                elif c.kind in ('valu', 'mfma'): w = max(w, 2)
                elif c.kind == 'salu' and not p.mn.startswith('v_cmp'): w = max(w, 1)
            if ('s', 'exec') in sd and c.kind == 'mfma': w = max(w, 4)
        if p.kind == 'mfma':
            big = {2: 5, 4: 8, 8: 12}[p.passes]
            if c.kind == 'mfma':
                if vd & (c.srcA | c.srcB): w = max(w, big)
                if vd & c.srcC:
                    if vd == c.srcC and p.passes == c.passes: w = max(w, 2 if p.passes == 2 else 0)
                    else: w = max(w, {2: 4, 4: 6, 8: 10}[p.passes])
                elif vd & c.defs:
                    w = max(w, big)
            elif c.kind in ('valu', 'ds', 'vm'):
                if vd & (c.uses | c.defs): w = max(w, big)
                if c.kind == 'valu' and p.srcC & c.defs: w = max(w, {2: 1, 4: 3, 8: 7}[p.passes])
        if p.kind == 'vm' and getattr(p, 'wide_store', False) and p.data & c.defs: w = max(w, 2)
        if p.kind == 'salu' and ('s', 'm0') in sd and c.kind == 'vm' and ('s', 'm0') in c.uses: w = max(w, 1)
        return w
```

```python
import sys, struct, json, re
import asmlib
from asmlib import Trace
NAME = "standalone__conformer_conv_module__speech"
def f2u(x): return struct.unpack('<I', struct.pack('<f', x))[0]
LOG2E = 1.4426950408889634; LN2 = 0.6931471805599453
NWG = 256
W2T = 3 << 18
FLG = 1 << 19

XB, XSZ = 0, 16896
X2B = 34816
SB = 51712
GB, GSZ = 117248, 4608
SP, SPQ = 154112, 2320
LDS = 163840
FB = SP + 4*SPQ
vXA, vTR, vGW, vGR, vSW, vOG, vXL, vW1 = range(8)
vFL = vW1
vOW, vOR, vTR1 = (127, 126), 125, vXA
TT = 8
R0 = 44
WW = 128
FR = 64
def V(i, n=1): return f"v{i}" if n == 1 else f"v[{i}:{i+n-1}]"
def R(i, n=1): return V(R0+i, n)
def Wt(s, j): return WW + 8*s + 4*j
WA = [None, R(80), R(81), R(82)]
sX, sW1, sDW, sW2, sO, sWS, sDBG = "s[4:7]", "s[8:11]", "s[12:15]", "s[16:19]", "s[20:23]", "s[24:27]", "s[28:31]"
sWAVE, sXROW, sT0, sT1 = "s32", "s33", "s34", "s35"
sK, sK2, sT2, sSQ, sGQ, sXQ, sQ = "s36", "s37", "s38", "s39", "s40", "s41", "s3"
sM1, sM2, sM3 = "s[42:43]", "s[44:45]", "s[46:47]"
sSPQ, sEX, sJ, sT3 = "s48", "s49", "s50", "s51"
sWM = "s[0:1]"
STAMP0 = 52

def merge(main, side, start=0, step=1):
    out = []; side = list(side); k = 0
    for i, m in enumerate(main):
        out.append(m)
        while k < len(side) and start + k*step <= i:
            out.append(side[k]); k += 1
    out += side[k:]
    return out
def quad(D, gi, e): return D[5*gi + e] if isinstance(D, list) else D + 20*gi + 4*e
def w1row(p): return (64*(p//4) + 16*((p//2) % 2) + 4*(p % 2)) * 1024
def w2row(s): return (32*(s//4 + 4*((s//2) & 1)) + 16*(s & 1)) * 512

def helper(stamps=False):
    t = Trace()
    t("L_helper:")
    t("s_add_u32 s2, s2, 4")
    t("v_lshrrev_b32 v1, 6, v0")
    t("v_and_b32 v2, 63, v0")
    t("v_readfirstlane_b32 s3, v1")
    t("v_lshrrev_b32 v3, 5, v2")
    t("v_bfe_u32 v4, v2, 2, 3")
    t("v_bcnt_u32_b32 v4, v4, 0")
    t("v_and_b32 v4, 1, v4")
    t("v_lshl_or_b32 v4, v3, 1, v4")
    t("v_bfe_u32 v5, v2, 3, 2")
    t("v_lshl_or_b32 v4, v5, 2, v4")
    t("v_and_b32 v5, 3, v2")
    t("v_lshlrev_b32 v5, 4, v5")
    t("v_lshl_add_u32 v4, v4, 9, v5")
    t("s_lshr_b32 s32, s3, 1"); t("s_and_b32 s33, s3, 1"); t("s_lshl_b32 s33, s33, 2"); t("s_add_u32 s32, s32, s33")
    t("s_lshl_b32 s32, s32, 14")
    t("s_lshl_b32 s33, s2, 7"); t("s_add_u32 s32, s32, s33")
    t("s_add_u32 s33, s32, 8192")
    t("s_lshl_b32 s34, s3, 12")
    t("s_mov_b32 s18, 131072"); t("s_mov_b32 s19, 0x20000")
    t("s_mov_b32 s26, 0x10000000"); t("s_mov_b32 s27, 0x20000")
    t("s_mov_b32 s30, 256"); t("s_mov_b32 s31, 0x20000")
    t("s_waitcnt lgkmcnt(0)")
    for k in range(4):
        t(f"s_add_u32 m0, s34, {1024*k - 64*(k % 2)}")
        t(f"buffer_load_dwordx4 v4, s[16:19], s{32 + k//2} offen offset:{64*(k % 2)} lds")
    t("v_lshrrev_b32 v6, 1, v0"); t("v_lshlrev_b32 v6, 7, v6"); t("v_and_b32 v7, 1, v0"); t("v_lshl_add_u32 v6, v7, 4, v6")
    t("v_and_b32 v6, 0x1fff, v6")
    for r in range(8, 12): t(f"v_mov_b32 v{r}, 0")
    t("s_lshl_b32 s35, s2, 13"); t(f"s_add_u32 s35, s35, {FLG}")
    t("s_cmp_ge_u32 s3, 2"); t("s_cbranch_scc1 L_h1")
    t("buffer_store_dwordx4 v[8:11], v6, s[24:27], s35 offen sc1")
    t("L_h1:")
    t("v_lshl_add_u32 v5, v2, 4, s34")
    t("v_bfe_u32 v7, v2, 4, 1"); t("v_lshlrev_b32 v7, 1, v7"); t("v_xor_b32 v7, v7, v2"); t("v_lshlrev_b32 v7, 4, v7")
    t("s_lshl_b32 s35, s2, 15"); t("s_add_u32 s35, s35, s34"); t(f"s_add_u32 s35, s35, {W2T}")
    t("s_waitcnt vmcnt(0)")
    if stamps: t("s_memrealtime s[60:61]")
    for k in range(4):
        for u in range(2): t(f"ds_read_b64_tr_b16 v[{12+4*k+2*u}:{13+4*k+2*u}], v5 offset:{2048*u + 1024*(k//2) + 8*(k % 2)}")
    for k in range(4): t(f"buffer_store_dwordx4 v[{12+4*k}:{15+4*k}], v7, s[24:27], s35 offen offset:{1024*k} sc1")
    t("v_mov_b32 v2, 1"); t("v_lshlrev_b32 v3, 8, v0"); t("s_lshl_b32 s35, s2, 2")
    t("v_add_u32 v3, s35, v3")
    t("s_waitcnt vmcnt(0)")
    t("s_barrier")
    if stamps: t("s_memrealtime s[62:63]")
    t("buffer_store_dword v2, v3, s[28:31], 0 offen sc1")
    if stamps:
        t("s_waitcnt vmcnt(0)"); t("s_memrealtime s[64:65]"); t("s_waitcnt lgkmcnt(0)")
        t("s_add_u32 s35, s2, 252"); t("s_lshl_b32 s35, s35, 3"); t("s_add_u32 s35, s35, s3"); t("s_lshl_b32 s35, s35, 7")
        for k, r in enumerate((98, 60, 62, 64)): t(f"v_mov_b32 v{8+k}, s{r}")
        t("buffer_store_dwordx4 v[8:11], off, s[24:27], s35")
    return '\n' + '\n'.join(t.out)
class Gen:
    def __init__(self, stamps=False, opts=None):
        self.stamps = stamps
        self.o = dict(prioX=1, prioX2=2, prioY=0, prioS=1, prioC=3, prioP=2, prioG2P=0, prioU=2, pf=5, pre=3); self.o.update(opts or {})
        self.names = {}; self.u8on = False
    def run(self, t, ops):
        for op in ops:
            if isinstance(op, str): t(op)
            elif isinstance(op, (list, tuple)): self.run(t, op)
            elif op is not None: op()
    def stamp(self, t, name):
        if self.o.get('probe') and name == self.o.get('probe0', 'start'): t("s_memrealtime s[98:99]")
        if self.o.get('probe') == name: t("s_memrealtime s[96:97]")
        if not self.stamps: return
        if name not in self.o['only']: return
        k = t.nstamp; t.nstamp += 1
        assert STAMP0 + 2*k + 1 <= 97, name
        t.stamp_names.append(name)
        t(f"{'s_memrealtime' if self.o.get('rt') else 's_memtime'} s[{STAMP0+2*k}:{STAMP0+2*k+1}]")
    def st(self, t, name): return lambda: self.stamp(t, name)
    def PX(self): return f"s_setprio {self.o['prioX']}"
    def PY(self): return f"s_setprio {self.o['prioY']}"
    def PX2(self): return f"s_setprio {self.o['prioX2']}"
    def PC(self): return f"s_setprio {self.o['prioC']}"
    def flat(self, ops):
        out = []
        for op in ops:
            if isinstance(op, (list, tuple)): out += self.flat(op)
            elif op is not None: out.append(op)
        return out
    def weave(self, t, mf, fill):
        carry = []
        for g, m in enumerate(mf):
            if isinstance(m, str): t(m); self.run(t, fill.get(g, []))
            else:
                f = self.flat(fill.get(g, []))
                t(m[0]); self.run(t, carry); t(m[1])
                k = (len(f) + 1)//2 if g + 1 < len(mf) else len(f)
                self.run(t, f[:k]); carry = f[k:]

    def prologue(self, t):
        t.nstamp = 0; t.stamp_names = []
        self.stamp(t, "start")
        if self.stamps: t("s_memrealtime s[98:99]")
        t(f"s_cmp_ge_u32 s2, {NWG}")
        t("s_cbranch_scc1 L_end")
        ka = self.o.get('ka', 0)
        if ka == 3:
            t("v_cmp_gt_u32 vcc, 64, v0")
            t("s_cbranch_vccz L_kw")
            t("s_load_dwordx8 s[60:67], s[0:1], 0")
            t("s_load_dwordx8 s[68:75], s[0:1], 24")
            t("s_waitcnt lgkmcnt(0)")
            t("L_kw:")
            t("s_barrier")
        if ka == 0:
            t("s_load_dwordx2 s[4:5], s[0:1], 0")
            t("s_load_dwordx2 s[8:9], s[0:1], 8")
            t("s_load_dwordx2 s[12:13], s[0:1], 16")
            t("s_load_dwordx2 s[16:17], s[0:1], 24")
            t("s_load_dwordx2 s[20:21], s[0:1], 32")
            t("s_load_dwordx2 s[28:29], s[0:1], 40")
            t("s_load_dwordx2 s[24:25], s[0:1], 48")
        else:
            t("s_load_dwordx8 s[80:87], s[0:1], 0")
            t("s_load_dwordx8 s[88:95], s[0:1], 24")
        l, h, a, b, c, d = R(0), R(1), R(2), R(3), R(4), R(5)
        t("s_lshr_b32 s3, s2, 3"); t("s_cmp_eq_u32 s3, 16"); t("s_cselect_b32 s3, 4, 0"); t("s_xor_b32 s2, s2, s3")
        t("s_sub_u32 s2, s2, 4")
        t("s_cbranch_scc1 L_helper")
        t(f"v_lshrrev_b32 {a}, 6, v0")
        t(f"v_and_b32 {l}, 63, v0")
        t(f"v_readfirstlane_b32 {sWAVE}, {a}")
        t(f"v_lshrrev_b32 {h}, 5, {l}")
        t(f"s_lshl_b32 {sT0}, {sWAVE}, 6")
        t(f"v_xor_b32 {a}, {l}, {h}")
        t(f"v_lshlrev_b32 v{vXL}, 4, {a}")
        t(f"v_and_b32 {c}, 3, {l}")
        t(f"v_lshlrev_b32 {d}, 4, {c}")
        t(f"v_add_u32 {R(6)}, {sT0}, {d}")
        t(f"v_lshrrev_b32 {b}, 2, {l}")
        t(f"v_bfe_u32 {R(9)}, {l}, 4, 1")
        t(f"v_and_b32 {R(10)}, 3, {b}")
        t(f"v_lshl_or_b32 {R(10)}, {h}, 3, {R(10)}")
        t(f"v_lshl_or_b32 {R(10)}, {R(9)}, 5, {R(10)}")
        t(f"v_lshlrev_b32 {R(9)}, 5, {R(9)}")
        t(f"v_xor_b32 {R(9)}, {R(9)}, {R(6)}")
        t(f"v_lshl_add_u32 v{vW1}, {R(10)}, 10, {R(9)}")
        t(f"v_lshl_add_u32 {R(7)}, {b}, 9, {R(6)}")
        t(f"v_and_b32 {R(7)}, 0xfffffeff, {R(7)}")
        t(f"v_add_u32 {R(8)}, 8192, {R(7)}")
        t("s_cmp_ge_u32 s2, 126")
        t(f"s_cselect_b32 {sT0}, 8192000, 0")
        t(f"s_cselect_b32 {sJ}, 126, 0")
        t(f"s_sub_u32 {sJ}, s2, {sJ}")
        t(f"s_lshl_b32 {sT1}, {sJ}, 16")
        t(f"s_and_b32 {sQ}, {sWAVE}, 3")
        t(f"s_lshl_b32 {sSQ}, {sQ}, 12")
        t(f"s_add_u32 {sXROW}, {sSQ}, {sT1}")
        t(f"s_sub_u32 {sXROW}, {sXROW}, 8192")
        t(f"s_add_u32 {sSQ}, {sSQ}, {SB}")
        t(f"s_mul_i32 {sXQ}, {sQ}, {4*1056}")
        t(f"s_mul_i32 {sGQ}, {sQ}, {2*GSZ}"); t(f"s_add_u32 {sGQ}, {sGQ}, {GB}")
        t("s_mov_b32 s6, 8192000"); t("s_mov_b32 s7, 0x20000")
        t("s_mov_b32 s10, 262144"); t("s_mov_b32 s11, 0x20000")
        t("s_mov_b32 s14, 15872"); t("s_mov_b32 s15, 0x20000")
        t(f"s_add_u32 {sT1}, {sT0}, {sT1}")
        t(f"s_lshl_b32 {sK}, {sQ}, 12")
        t(f"s_add_u32 {sK}, {sK}, {sXROW}")
        t(f"s_mul_i32 {sT3}, {sQ}, {4*1088}")
        t(f"v_lshrrev_b32 {R(24)}, 4, {l}")
        t(f"v_xor_b32 {R(25)}, {l}, {R(24)}")
        t(f"v_and_b32 {R(25)}, 15, {R(25)}")
        t(f"v_lshlrev_b32 {R(25)}, 4, {R(25)}")
        t(f"v_lshl_add_u32 {R(24)}, {R(24)}, 9, {R(25)}")
        t(f"v_add_u32 {R(56)}, {sK}, {R(24)}")
        for i in range(1, 4): t(f"v_add_u32 {R(56+i)}, {2048*i}, {R(56)}")
        t(f"s_bfe_u32 {sK}, s2, 0x40003")
        t(f"s_lshl_b32 {sK}, {sK}, 14")
        t(f"v_lshl_add_u32 {R(11)}, v0, 6, {sK}")
        if self.o['pf'] & 4: t(f"v_and_b32 {R(11)}, 0xfffffeff, {R(11)}")
        if 'pr0' in self.o:
            t(f"s_lshr_b32 {sK}, {sK}, 1")
            t(f"v_lshl_add_u32 {R(63)}, v0, 5, {sK}")
            t(f"v_and_b32 {R(63)}, 0xfffffeff, {R(63)}")
        t("s_waitcnt lgkmcnt(0)")
        self.stamp(t, "karg")
        if ka:
            t("s_mov_b64 s[12:13], s[84:85]"); t("s_mov_b64 s[8:9], s[82:83]")
            t(f"s_add_u32 s4, s80, {sT0}"); t("s_addc_u32 s5, s81, 0")
            t("s_mov_b64 s[16:17], s[88:89]"); t("s_mov_b64 s[20:21], s[90:91]"); t("s_mov_b64 s[28:29], s[92:93]"); t("s_mov_b64 s[24:25], s[94:95]")
        else:
            t(f"s_add_u32 s4, s4, {sT0}"); t("s_addc_u32 s5, s5, 0")
        tw = self.o.get('tw', 0)
        if tw & 1:
            t(f"s_lshl_b32 {sK}, {sJ}, 16"); t(f"s_min_u32 {sK}, {sK}, {8192000-64}")
            t(f"s_load_dword s42, s[4:5], {sK}")
            t("s_load_dword s43, s[8:9], 0")
            t("s_load_dword s37, s[12:13], 0")
        t("s_setprio 2")
        t(f"s_cmp_ge_u32 {sWAVE}, 4")
        t("s_cbranch_scc1 L_pF")
        self.x01 = {}; self.dwh2 = {}; self.vm0 = {}; self.xb0 = {}; self.w0 = {}
        for grp in 'LF':
            t.vm = []
            if grp == 'F':
                t("L_pF:")
                if self.o.get('xprio', 1): t("s_setprio 3")
            for ch in self.o.get('ord' + grp, {'L': 'pxw', 'F': 'ce'}[grp]):
                if ch == 'd': self.dwh2[grp] = self.dwdma(t)
                if ch == 'e':
                    t(f"s_bfe_u32 {sT0}, s2, 0x40003"); t(f"s_lshl_b32 {sT0}, {sT0}, 10")
                    if grp == 'F': t(f"s_sub_u32 {sT0}, {sT0}, 1024")
                    t(f"v_lshl_add_u32 {R(9)}, v0, 2, {sT0}")
                    t(f"buffer_load_dword {V(253)}, {R(9)}, {sDW}, 0 offen")
                if ch == 'B':
                    t.wait_op(*self.x01.get('F', [])); t("s_barrier"); t("s_setprio 0")
                if ch == 'x':
                    self.x01[grp] = self.xhalf(t, 0)
                if ch == 'y': self.xb0[grp] = self.xhalf(t, 1)
                if ch == 'w':
                    assert grp == 'L'
                    k = len(self.w0)
                    base, off = (sSQ, k*16384) if k < 2 else (sGQ, (k-2)*2048)
                    self.w0[k] = self.wdma(t, 1, k, [(base, off + 1024*j, None) for j in range(2)])
                if ch == 'q':
                    t(f"v_subrev_u32 {R(10)}, 16384, {R(11)}")
                    t(f"buffer_load_dword {V(252)}, {R(10)}, {sW1}, 0 offen")
                if ch == 'p':
                    if grp == 'F': t(f"v_subrev_u32 {R(11)}, {16384 - (256 if self.o['pf'] & 4 else 0)}, {R(11)}")
                    if 'pr0' in self.o:
                        t(f"s_mov_b32 {sT0}, {self.o['pr0']*1024}")
                        t(f"buffer_load_dword {V(254)}, {R(63)}, {sW1}, {sT0} offen")
                    else: t(f"buffer_load_dword {V(254)}, {R(11)}, {sW1}, 0 offen")
                if ch == 'c':
                    t("s_getpc_b64 s[44:45]")
                    t(f"L_pc{grp}:")
                    t(f"s_mov_b32 s46, L_code_end-L_pc{grp}"); t("s_mov_b32 s47, 0x20000")
                    t(f"s_bfe_u32 {sT0}, s2, 0x30003")
                    t(f"s_lshl_b32 {sT0}, {sT0}, 12")
                    if grp == 'F': t(f"s_sub_u32 {sT0}, {sT0}, 4096")
                    t(f"v_lshl_add_u32 {R(9)}, v0, 4, {sT0}")
                    t(f"buffer_load_dword {V(255)}, {R(9)}, s[44:47], 0 offen")
            self.vm0[grp] = list(t.vm)
            if grp == 'L': t("s_branch L_p4")
        t("L_p4:")
        t("s_setprio 0")
        t.vm = []
        if tw & 1: t("s_waitcnt lgkmcnt(0)")
        self.stamp(t, "xiss")
        t(f"s_add_u32 s20, s20, {sT1}"); t("s_addc_u32 s21, s21, 0")
        t("s_mov_b32 s22, 65536"); t("s_mov_b32 s23, 0x20000")
        t("s_mov_b32 s26, 0x10000000"); t("s_mov_b32 s27, 0x20000")
        t("s_mov_b32 s30, 256"); t("s_mov_b32 s31, 0x20000")
        t(f"s_mul_i32 {sSPQ}, {sQ}, {SPQ}"); t(f"s_add_u32 {sSPQ}, {sSPQ}, {SP}")
        self.addr_rest(t)

    def xhalf(self, t, hh):
        hs = []
        for i in range(4):
            t(f"s_add_u32 m0, {sT3}, {hh*(2*8704 - 256) + i*1088}")
            hs.append(t(f"buffer_load_dwordx4 {R(56+i)}, {sX}, 0 offen offset:{hh*256} nt lds"))
        return hs
    def addr_rest(self, t):
        l, h, a, b, c, d = R(0), R(1), R(2), R(3), R(4), R(5)
        e, f = R(9), R(10)
        t(f"v_bfe_u32 {e}, {l}, 2, 2")
        t(f"v_lshlrev_b32 {e}, 6, {e}")
        t(f"v_lshl_or_b32 {e}, {h}, 9, {e}")
        t(f"v_bfe_u32 {R(13)}, {l}, 4, 1")
        t(f"v_lshl_or_b32 {e}, {R(13)}, 5, {e}")
        t(f"v_lshl_or_b32 {R(12)}, {c}, 3, {e}")
        t(f"s_lshl_b32 s0, 1, {sWAVE}"); t("s_mov_b32 s1, 0")
        t(f"s_add_u32 {sT0}, {sSQ}, {2*16384}")
        t(f"s_mov_b32 {sT1}, 16384")
        self.taddr(t, V(TT+34), V(TT+35), b, c, e, f)
        t(f"s_cmp_lt_u32 {sWAVE}, 4")
        t("s_cbranch_scc1 L_notab")
        t(f"v_mov_b32 v{vXL}, {V(TT+34)}")
        t(f"v_bfe_u32 {e}, {l}, 2, 2")
        t(f"v_and_b32 {f}, 13, {l}")
        t(f"v_bcnt_u32_b32 {f}, {f}, 0")
        t(f"v_and_b32 {f}, 1, {f}")
        t(f"v_lshl_or_b32 {f}, {e}, 1, {f}")
        t(f"v_bfe_u32 {e}, {l}, 1, 1")
        t(f"v_lshl_or_b32 {f}, {e}, 3, {f}")
        t(f"v_mul_u32_u24 {f}, 144, {f}")
        t(f"v_mul_u32_u24 {R(60)}, {16384-1152}, {e}")
        t(f"s_add_u32 {sT0}, {sSQ}, {2*16384}")
        t(f"v_lshl_add_u32 {e}, {R(13)}, 14, {f}")
        t(f"v_add_u32 {R(14)}, {sT0}, {e}")
        t(f"s_sub_u32 {sT1}, {sSPQ}, {sT0}")
        t(f"v_add_u32 {R(21)}, {sT1}, {V(TT+34)}")
        t(f"v_mul_u32_u24 {e}, {16384-1152}, {h}")
        t(f"v_add_u32 {e}, 2304, {e}")
        t(f"v_add_u32 {R(20)}, {e}, {V(TT+34)}")
        t(f"s_add_u32 {sT0}, {sT0}, 2304")
        t(f"v_add_u32 {R(60)}, {sT0}, {R(60)}")
        t(f"v_cmp_eq_u32 vcc, 0, {R(13)}")
        t(f"v_mov_b32 {e}, {sSPQ}")
        t(f"s_add_u32 {sT0}, {sGQ}, {GSZ}")
        t(f"v_cndmask_b32 {R(60)}, {e}, {R(60)}, vcc")
        t(f"v_add_u32 {R(60)}, {f}, {R(60)}")
        t(f"v_mov_b32 {R(15)}, 0")
        t(f"v_and_b32 {e}, 15, {l}")
        t(f"v_lshl_add_u32 {R(22)}, {e}, 2, {sT0}")
        t(f"v_lshlrev_b32 {e}, 2, {l}")
        t(f"v_add_u32 {R(23)}, {FB}, {e}")
        t(f"v_cmp_eq_u32 vcc, 0, {h}")
        t(f"v_lshlrev_b32 {f}, 4, {h}")
        t(f"v_lshl_add_u32 {f}, {R(13)}, 3, {f}")
        t(f"v_cndmask_b32 {R(62)}, {R(60)}, {R(14)}, vcc")
        t(f"v_add_u32 {R(16)}, {f}, {R(14)}")
        t(f"v_xor_b32 {R(17)}, 8, {R(16)}")
        t(f"v_add_u32 {R(60)}, {f}, {R(60)}")
        t(f"v_xor_b32 {R(61)}, 8, {R(60)}")
        t(f"v_lshlrev_b32 {e}, 8, {R(13)}")
        t(f"v_add3_u32 {R(18)}, {e}, {R(12)}, {sT0}")
        t(f"v_xor_b32 {R(19)}, 256, {R(18)}")
        t("L_notab:")
        t(f"s_mov_b32 {sK}, {hex(f2u(-LN2))}")
        t(f"s_mov_b32 {sK2}, {hex(f2u(-LOG2E))}")
        t(f"v_bfe_u32 {a}, {l}, 2, 3")
        t(f"v_bcnt_u32_b32 {a}, {a}, 0")
        t(f"v_and_b32 {a}, 1, {a}")
        t(f"v_lshl_or_b32 {a}, {h}, 1, {a}")
        t(f"v_bfe_u32 {e}, {l}, 3, 2")
        t(f"v_lshl_or_b32 {a}, {e}, 2, {a}")
        t(f"s_sub_u32 {sT0}, {sGQ}, 64")
        t(f"v_mul_u32_u24 {e}, 144, {a}")
        t(f"v_add3_u32 v{vGR}, {e}, {d}, {sT0}")
        q = R(6)
        t(f"v_lshrrev_b32 {q}, 4, {l}")
        t(f"v_and_b32 {e}, 15, {l}")
        t(f"v_mul_u32_u24 {e}, 144, {e}")
        t(f"v_lshlrev_b32 {f}, 4, {q}")
        t(f"v_add3_u32 v{vGW}, {e}, {f}, {sGQ}")
        t(f"v_lshlrev_b32 {e}, 1, {R(13)}")
        t(f"v_xor_b32 {e}, {e}, {l}")
        t(f"v_lshl_add_u32 v{vSW}, {e}, 4, {sSQ}")
        t(f"v_lshlrev_b32 {e}, 6, {b}")
        t(f"v_lshl_or_b32 {e}, {R(13)}, 5, {e}")
        t(f"v_lshl_or_b32 {e}, {c}, 3, {e}")
        t(f"v_add_u32 v{vTR}, {SB}, {e}")
        t(f"v_add_u32 {R(80)}, {sSQ}, {e}")
        t(f"v_xor_b32 {R(81)}, 32, {R(80)}")
        t(f"v_add_u32 {R(82)}, {sGQ}, {e}")
        t(f"v_xor_b32 {V(TT+33)}, 32, {R(82)}")
        t(f"v_bfe_u32 {e}, {l}, 2, 2")
        t(f"v_mul_u32_u24 {f}, {2*1088}, {e}")
        t(f"v_lshl_add_u32 {f}, {c}, 8, {f}")
        t(f"v_lshl_add_u32 {f}, {R(13)}, 6, {f}")
        t(f"v_xor_b32 {a}, {c}, {h}")
        t(f"v_lshl_add_u32 {R(83)}, {a}, 4, {f}")
        t(f"v_xor_b32 v{vOG}, 32, {R(83)}")
        t(f"v_bfe_u32 {f}, {l}, 1, 1")
        t(f"v_lshl_or_b32 {e}, {e}, 2, {f}")
        t(f"v_mul_u32_u24 {e}, 1056, {e}")
        t(f"v_and_b32 {f}, 1, {l}")
        t(f"v_lshl_add_u32 {e}, {f}, 9, {e}")
        t(f"v_lshl_add_u32 {e}, {R(13)}, 6, {e}")
        t(f"v_and_b32 {a}, 1, {a}")
        t(f"v_lshl_add_u32 v{vXA}, {a}, 4, {e}")
        for m, v in ((42, 0x88888888), (44, 0xcccccccc), (46, 0xeeeeeeee)):
            t(f"s_mov_b32 s{m}, {hex(v)}"); t(f"s_mov_b32 s{m+1}, {hex(v)}")
        t(f"s_lshl_b32 {sEX}, s2, 14")
        t(f"s_add_u32 {sEX}, {sEX}, {(1<<20) - SB}")
    def taddr(self, t, d0, d1, b, c, e, f):
        t(f"v_and_b32 {e}, 1, {c}")
        t(f"v_mul_u32_u24 {e}, 72, {e}")
        t(f"v_lshrrev_b32 {f}, 1, {c}")
        t(f"v_lshl_add_u32 {e}, {f}, 2, {e}")
        t(f"v_mul_u32_u24 {f}, 144, {b}")
        t(f"v_sub_u32 {f}, {f}, {e}")
        t(f"s_add_u32 {sT0}, {sT0}, {19*4}")
        t(f"v_add_u32 {d0}, {sT0}, {f}")
        t(f"v_add_u32 {d1}, {sT1}, {d0}")
    def tload(self, base, a0, a1):
        return [f"ds_read2_b32 {V(base+18*gi+2*s,2)}, {(a0,a1)[gi]} offset0:{2*s} offset1:{2*s+1}" for gi in range(2) for s in range(9)]
    def dwdma(self, t):
        hs = []
        for v in range(4):
            t(f"s_add_u32 m0, {sGQ}, {GSZ + 64 + 1024*v - 256*(v//2)}")
            hs.append(t(f"buffer_load_dwordx4 {R(7+v%2)}, {sDW}, 0 offen offset:{256*(v//2)} lds"))
        return hs
    def tbuild2(self, t):
        t.wait_op(*self.dwh)
        t(f"ds_write_b32 {R(22)}, {R(15)}")
        t(f"ds_write_b32 {R(23)}, {R(15)}")
        for F in range(2):
            B = 24 + 16*F
            for k in range(2):
                for v in range(2):
                    for u in range(2):
                        t(f"ds_read_b64_tr_b16 {R(B+8*k+4*v+2*u,2)}, {R(18+u)} offset:{F*2048 + 64*(1-k) + v*1024}")
        t(f"ds_write2_b32 {R(62)}, {R(15)}, {R(15)} offset0:0 offset1:1")
        t(f"ds_write2_b32 {R(62)}, {R(15)}, {R(15)} offset0:18 offset1:35")
        t(f"ds_write_b32 {R(62)}, {R(15)} offset:144")
        for F in range(2):
            B = 24 + 16*F; A = (16, 60)[F]
            for v in range(2):
                for u in range(2):
                    t(f"ds_write_b64 {R(A+u)}, {R(B+4*v+2*u,2)} offset:{8+32*v}")
            for v in range(2):
                for u in range(2):
                    t(f"ds_write2_b32 {R(A+u)}, {R(B+8+4*v+2*u)}, {R(B+9+4*v+2*u)} offset0:{19+8*v} offset1:{20+8*v}")

    def xdma(self, t, c, tmp):
        hs = []
        for q in range(4):
            t(f"s_add_u32 {sT1}, {sXROW}, {c*16384 + q*1024}")
            t(f"s_add_u32 m0, {sXQ}, {XB + (c%3)*XSZ + q*1056}")
            t(f"v_add_u32 {tmp}, {sT1}, v{vXL}")
            hs.append(t(f"buffer_load_dwordx4 {tmp}, {sX}, 0 offen nt lds"))
        return hs
    def slot(self, kind, i, regs, F=0):
        if kind == 's': return (sSQ, (i // 2)*16384 + F*2048 + (i % 2)*1024, regs['s'])
        if kind == 'g': return (sGQ, F*GSZ + i*1024, regs['g'])
        if kind == 'p': return (sSPQ, i*1024, regs['p'])
        if kind == 'x2': return (sXQ, X2B + i*1024, regs['x'])
    def wdma1(self, t, which, s, pair, j):
        base, off, _ = pair[j]
        jo = 512*j if which == 1 else 64*j
        t(f"s_add_u32 m0, {base}, {off - jo}")
        if j == 0: t(f"s_mov_b32 {sT2}, {w1row(s) if which == 1 else w2row(s)}")
        return t(f"buffer_load_dwordx4 v{vW1 if which == 1 else vOG}, {sW1 if which == 1 else sW2}, {sT2} offen offset:{jo} lds")
    def wdma(self, t, which, s, pair): return [self.wdma1(t, which, s, pair, j) for j in range(2)]
    def trtile(self, t, dst, sl):
        _, off, a = sl
        return [t(f"ds_read_b64_tr_b16 {V(dst+2*u,2)}, {a} offset:{off+256*u}") for u in range(2)]

    def xrd(self, c, s, fr):
        S, mt = s//2, s % 2
        if c < 2: return f"ds_read_b128 {R(fr,4)}, {(R(83), 'v%d' % vOG)[S % 2]} offset:{((S//4)*2 + c)*8704 + ((S//2) % 2)*128 + mt*1088}"
        return f"ds_read_b128 {R(fr,4)}, v{vXA} offset:{(X2B if c == 2 else 0) + (S//2)*128 + (S % 2)*32 + mt*2112}"
    def mm1(self, s, j, acc, fr):
        S, mt = s//2, s % 2
        return [f"v_mfma_f32_16x16x32_bf16 {R(acc+16*j+8*n+4*mt,4)}, {R(fr,4)}, {V(WW+16*S+8*j+4*n,4)}, {R(acc+16*j+8*n+4*mt,4) if S else 0}" for n in range(2)]
    def ch1(self, S2, mt, tile, acc, fa, fb):
        j, n = 1 - tile//2, tile % 2; a = R(acc+16*j+8*n+4*mt, 4)
        return [f"v_mfma_f32_16x16x32_bf16 {a}, {R(f,4)}, {V(WW+16*S+8*j+4*n,4)}, {a if S else 0}" for S, f in ((2*S2, fa), (2*S2+1, fb))]
    @staticmethod
    def fpos(p): return 2*(2*(p//4) + p % 2) + (p//2) % 2
    def wtr(self, p, j, n, pair):
        _, off, a = pair[j]
        return f"ds_read_b64_tr_b16 {V(WW+16*(p//2)+8*j+4*n+2*(p%2),2)}, {a[n]} offset:{off}"
    def weave2(self, t, mf, fill):
        for g, m in enumerate(mf):
            if self.o.get('pw', 1): t.prewait(*m)
            t(m[0]); self.run(t, fill.get(g - 0.5, [])); t(m[1]); self.run(t, fill.get(g, []))
    def m0so(self, which, s, pair, j):
        base, off, _ = pair[j]
        jo = 512*j if which == 1 else 64*j
        o = [f"s_add_u32 m0, {base}, {off - jo}"]
        if j == 0: o.append(f"s_mov_b32 {sT2}, {w1row(s) if which == 1 else w2row(s)}")
        return o
    def dmaonly(self, which, j):
        jo = 512*j if which == 1 else 64*j
        return f"buffer_load_dwordx4 v{vW1 if which == 1 else vOG}, {sW1 if which == 1 else sW2}, {sT2} offen offset:{jo} lds"
    def g1p(self, t, pairs, pend, D, hooks, pause=None):
        fr = lambda s, u: FR + 8*(s % 2) + 4*u
        last = {}; lastw = {}
        xa = lambda s: self.xrd(s % 2, 2*(2*(s//4)) + (s//2) % 2, fr(s, 0))
        def xb(s): last[s] = t(self.xrd(s % 2, 2*(2*(s//4) + 1) + (s//2) % 2, fr(s, 1)))
        def wall(p):
            t.wait_op(*pend[p]); self.run(t, [self.wtr(p, j, n, pairs[p]) for j in (1, 0) for n in range(2)])
        for s in range(max(pend) + 1, D): pend[s] = self.wdma(t, 1, s, pairs[s])
        t(xa(0)); xb(0); t(xa(1)); xb(1)
        wall(0); wall(1)
        h = t.lds[-1]
        wall(2)
        t.wait_op(h)
        pend[D] = self.wdma(t, 1, D, pairs[D])
        wall(3)
        pend[D+1] = self.wdma(t, 1, D+1, pairs[D+1])
        mf = []; fill = {}
        def dma(p, j): pend.setdefault(p, []).append(t(self.dmaonly(1, j)))
        def wl(r): lastw[r] = t(self.wtr(r, 0, 1, pairs[r]))
        self.run(t, self.m0so(1, D+2, pairs[D+2], 0))
        t.wait_lds()
        for s in range(16):
            mf += [self.ch1(s//4, (s//2) % 2, tile, 32*(1 - s % 2), fr(s, 0), fr(s, 1)) for tile in range(4)]
            g = 4*s; p = s + 2 + D; r = s + 4
            for k in range(8): fill[g - 0.5 + k/2] = []
            if r < 16:
                if self.o.get('vmw') and s: fill[g-1] += [lambda r=r: t.wait_op(*pend[r])]
                fill[g-0.5] += [lambda r=r: t.wait_op(*pend[r]), self.wtr(r, 1, 0, pairs[r])]
                fill[g] += [self.wtr(r, 1, 1, pairs[r]), self.wtr(r, 0, 0, pairs[r])]; fill[g+0.5] += [lambda r=r: wl(r)]
            if p < 16:
                fill[g+1] += [lambda p=p: dma(p, 0)]; fill[g+1.5] += [self.m0so(1, p, pairs[p], 1)]
                fill[g+2] += [lambda p=p: dma(p, 1)]
            if pause and s == 6: pass
            elif pause and s == 7: fill[g+3] += list(pause) + [xa(8), lambda: xb(8), xa(9), lambda: xb(9)]
            elif s + 2 < 16:
                fill[g+2.5] += [xa(s+2)]; fill[g+3] += [lambda s=s: xb(s+2)]
            if p + 1 < 16:
                m, so = self.m0so(1, p+1, pairs[p+1], 0); fill[g+2.5] += [m]; fill.setdefault(g+4.5, []); self.pso = getattr(self, 'pso', {}); self.pso[g+4.5] = so
            if g + 0.5 in getattr(self, 'pso', {}): fill[g+0.5] += [self.pso.pop(g+0.5)]
            if s + 1 < 16: fill[g+3] += [lambda s=s, r=r: t.wait_op(last[s+1], *([lastw[r]] if s % 4 == 3 and r in lastw else []))]
            fill[g+3].append(self.st(t, f"k{s}"))
        for g, ops in hooks.items(): fill[g].extend(ops)
        self.weave2(t, mf, fill)
    def pre_g1(self, c): return [self.xrd(c, self.fpos(p), FR + 4*p) for p in range(4)]
    def g1(self, t, c, extra={}, wskip=False):
        mf = []; fill = {1.5: [self.PX2()]}
        for q in range(8):
            fa, fb = FR + 8*(q % 2), FR + 8*(q % 2) + 4
            mf += [self.ch1(q//2, q % 2, tile, 0, fa, fb) for tile in range(4)]
            if q + 2 < 8:
                fill[4*q+2.5] = [self.xrd(c, self.fpos(2*q+4), fa)]; fill[4*q+3] = [self.xrd(c, self.fpos(2*q+5), fb)]
        for g, ops in extra.items(): fill.setdefault(g, []).extend(ops)
        self.weave2(t, mf, fill)

    def drd(self, o, F, gi, e, D):
        if o % 2 == 0: a, off = f"v{vGR}", 64 + 16*e
        elif e == 0: a, off = f"v{vGR}", 128
        elif e == 4: a, off = f"v{vGR}", 64
        else: a, off = WA[e], 16*e
        return f"ds_read_b128 {V(quad(D, gi, e),4)}, {a} offset:{F*GSZ + gi*2304 + off}"
    def wrapaddr(self):
        return [f"v_add_u32 {WA[3]}, 128, v{vGR}"] + \
               [f"v_cndmask_b32 {dst}, {WA[3]}, v{vGR}, {m}" for dst, m in ((WA[1], sM1), (WA[2], sM2), (WA[3], sM3))]
    def gwr(self, c, F, half, src): return f"ds_write_b128 v{vGW}, {V(src,4)} offset:{F*GSZ + (c%2)*64 + 2304*half}"
    @staticmethod
    def u8(ops):
        o = list(ops); tr = lambda x: isinstance(x, str) and x.startswith(('v_exp', 'v_rcp')); pl = lambda x: isinstance(x, str) and x.startswith('v_') and not tr(x)
        i = 0; run = 0
        while i < len(o):
            if pl(o[i]): run += 1
            else:
                if tr(o[i]) and run % 2 == 1 and i + 1 < len(o) and pl(o[i+1]):
                    a = asmlib.Ins(o[i-1]); b = asmlib.Ins(o[i])
                    if not (a.defs & (b.uses | b.defs) or b.defs & a.uses):
                        o[i-1], o[i] = o[i], o[i-1]; run = 1; i += 1; continue
                run = 0
            i += 1
        return o
    def glu_half(self, c, F, half, acc=0, pk=None):
        o = []
        a = [R0 + acc + 8*half + i for i in range(8)]; b = [16 + x for x in a]
        for i in range(8): o.append(f"v_mul_f32 v{b[i]}, {sK2}, v{b[i]}")
        for i in range(10):
            if i < 8: o.append(f"v_exp_f32 v{b[i]}, v{b[i]}")
            if i >= 2: o.append(f"v_fma_f32 v{b[i-2]}, v{b[i-2]}, {sK}, {sK}")
        for i in range(12):
            if i < 8: o.append(f"v_rcp_f32 v{b[i]}, v{b[i]}")
            if 2 <= i < 10: o.append(f"v_mul_f32 v{b[i-2]}, v{a[i-2]}, v{b[i-2]}")
            if i >= 5 and i % 2 == 1:
                k = (i-5)//2
                o.append(f"v_cvt_pk_bf16_f32 v{(pk or a[0])+k}, v{b[2*k]}, v{b[2*k+1]}")
        if self.u8on: o = self.u8(o)
        o.append(self.gwr(c, F, half, pk or a[0]))
        return o
    def si(self, y, tmp, off):
        o = []
        for i in range(10):
            if i < 8: o.append(f"v_exp_f32 v{tmp+i}, v{y+i}")
            if i >= 2: o.append(f"v_fma_f32 v{tmp+i-2}, v{tmp+i-2}, {sK2}, {sK2}")
        for i in range(12):
            if i < 8: o.append(f"v_rcp_f32 v{tmp+i}, v{tmp+i}")
            if 2 <= i < 10: o.append(f"v_mul_f32 v{tmp+i-2}, v{y+i-2}, v{tmp+i-2}")
            if i >= 5 and i % 2 == 1:
                k = (i-5)//2
                o.append(f"v_cvt_pk_bf16_f32 v{y+k}, v{tmp+2*k}, v{tmp+2*k+1}")
        o.append(f"ds_write_b128 v{vSW}, {V(y,4)} offset:{off}")
        return o
    def cv(self, T, D, Y, bygroup=False):
        o = []
        if bygroup:
            return [f"v_mfma_f32_4x4x4_16b_bf16 {V(Y+8*gi+4*z,4)}, {V(T+18*gi+2*s,2)}, {V(quad(D, gi, (s+z)//2) + 2*((s+z) % 2),2)}, {V(Y+8*gi+4*z,4) if s else 0}"
                    for gi in range(2) for s in range(9) for z in range(2)]
        for d in range(10):
            for z in range(2):
                s = d - z
                if not 0 <= s < 9: continue
                for gi in range(2):
                    a = V(Y + 8*gi + 4*z, 4)
                    o.append(f"v_mfma_f32_4x4x4_16b_bf16 {a}, {V(T+18*gi+2*s,2)}, {V(quad(D, gi, d//2) + 2*(d % 2),2)}, {a if s else 0}")
        return o
    def cvsi(self, cvops, siops, n=3):
        cost = lambda x: 8 if x.startswith(('v_exp', 'v_rcp')) else 4
        vs = [x for x in siops if isinstance(x, str) and x.startswith('v_')]
        tot = sum(map(cost, vs)); ng = -(-len(cvops)//n)
        out = []; acc = 0; k = 0
        for x in siops:
            while k < ng and acc >= k*tot/ng:
                out += cvops[k*n:(k+1)*n]; k += 1
            out.append(x)
            if isinstance(x, str) and x.startswith('v_'): acc += cost(x)
        return out + cvops[k*n:]
    def si16(self, y, tmp, o, F, cv=None, exa=(), exb=(), exc=(), pre=(), mid=(), pos=None, defer=None, skip=0):
        ex = [f"v_exp_f32 v{tmp+i}, v{y+i}" for i in range(16)]
        fm = [f"v_fma_f32 v{tmp+i}, v{tmp+i}, {sK2}, {sK2}" for i in range(16)]
        rc = [f"v_rcp_f32 v{tmp+i}, v{tmp+i}" for i in range(16)]
        mc = []
        for i in range(16):
            mc.append(f"v_mul_f32 v{tmp+i}, v{y+i}, v{tmp+i}")
            if i >= 3 and i % 2 == 1: k = (i-3)//2; mc.append(f"v_cvt_pk_bf16_f32 v{y+8*(k//4)+k%4}, v{tmp+2*k}, v{tmp+2*k+1}")
        mc.append(f"v_cvt_pk_bf16_f32 v{y+11}, v{tmp+14}, v{tmp+15}")
        wr = [f"ds_write_b128 v{vSW}, {V(y+8*gi,4)} offset:{self.soff(o, F, gi)}" for gi in range(2)]
        ef = ex[:2] + [x for p in zip(ex[2:], fm) for x in p] + fm[14:]
        if self.u8on: ef = self.u8(ef)
        pa, pb, pc = pos or (8, 22, 34)
        if defer is not None: defer.extend(wr); wr = []
        if cv:
            S = lambda n: (lambda: self.stamp(self.tcur, f"{n}{o}{F}"))
            v = merge(merge(merge((ef + rc)[skip:], [[S('c'), list(exc), S('d')]], pc), [[S('a'), list(exb), S('b')]], pb), [list(exa)], pa)
            z = []; k = 0
            for n, m in enumerate(cv):
                z.append(m)
                if n % 3 != 2: z.append(mc[k]); k += 1
                if n == 17: z += list(mid)
            return v + [S('e'), self.PC(), 's_waitcnt lgkmcnt(0)', S('f')] + list(pre) + [S('g')] + z + [self.PS(), S('h')] + wr
        ef = merge(merge(ef, [list(exb)], pb), [list(exa)], pa)
        r = rc[:2]; k = 0
        for n in range(2, 16):
            r.append(rc[n]); r.append(mc[k]); k += 1
            if mc[k].startswith('v_cvt'): r.append(mc[k]); k += 1
        r = r + mc[k:]
        if self.u8on: r = self.u8(r)
        return ef + merge(r, [list(exc)], 2) + wr
    def si16pk(self, y, tmp, o, F):
        K2 = "s[16:17]"
        ex = [f"v_exp_f32 v{tmp+i}, v{y+i}" for i in range(16)]
        fm = [f"v_pk_fma_f32 {V(tmp+i,2)}, {V(tmp+i,2)}, {K2}, {K2}" for i in range(0, 16, 2)]
        rc = [f"v_rcp_f32 v{tmp+i}, v{tmp+i}" for i in range(16)]
        ml = [f"v_pk_mul_f32 {V(tmp+i,2)}, {V(y+i,2)}, {V(tmp+i,2)}" for i in range(0, 16, 2)]
        cv = [f"v_cvt_pk_bf16_f32 v{y+8*(k//4)+k%4}, v{tmp+2*k}, v{tmp+2*k+1}" for k in range(8)]
        wr = [f"ds_write_b128 v{vSW}, {V(y+8*gi,4)} offset:{self.soff(o, F, gi)}" for gi in range(2)]
        return [f"s_mov_b32 s16, {sK2}", f"s_mov_b32 s17, {sK2}"] + merge(ex, fm, 3, 2) + merge(rc, ml, 3, 2) + cv + wr
    def glu_half_pk(self, c, F, half, acc=0, pk=None):
        K, K2 = "s[12:13]", "s[14:15]"
        a = R0 + acc + 8*half; b = a + 16; p = pk or a
        m1 = [f"v_pk_mul_f32 {V(b+i,2)}, {V(b+i,2)}, {K2}" for i in range(0, 8, 2)]
        ex = [f"v_exp_f32 v{b+i}, v{b+i}" for i in range(8)]
        fm = [f"v_pk_fma_f32 {V(b+i,2)}, {V(b+i,2)}, {K}, {K}" for i in range(0, 8, 2)]
        rc = [f"v_rcp_f32 v{b+i}, v{b+i}" for i in range(8)]
        m2 = [f"v_pk_mul_f32 {V(b+i,2)}, {V(a+i,2)}, {V(b+i,2)}" for i in range(0, 8, 2)]
        cv = [f"v_cvt_pk_bf16_f32 v{p+k}, v{b+2*k}, v{b+2*k+1}" for k in range(4)]
        return m1 + merge(ex, fm, 3, 2) + merge(rc, m2, 3, 2) + cv + [self.gwr(c, F, half, p)]
    def mix(self, ex, v, cap, base, g0=0):
        k = 0; c = lambda x: 8 if x.startswith(('v_exp', 'v_rcp')) else 4
        for g in range(g0, 32):
            room = cap - base(g)
            while k < len(v) and room >= c(v[k]):
                room -= c(v[k]); ex.setdefault(g, []).append(v[k]); k += 1
        return v[k:]
    def glu16(self, c, F, pk, cv=None, prio=None, side=(), at=0, step=1):
        a = R0; b = R0 + 16
        m1 = [f"v_mul_f32 v{b+i}, {sK2}, v{b+i}" for i in range(16)]
        ex = [f"v_exp_f32 v{b+i}, v{b+i}" for i in range(16)]
        fm = [f"v_fma_f32 v{b+i}, v{b+i}, {sK}, {sK}" for i in range(16)]
        rc = [f"v_rcp_f32 v{b+i}, v{b+i}" for i in range(16)]
        m2 = [f"v_mul_f32 v{b+i}, v{a+i}, v{b+i}" for i in range(16)]
        cp = [f"v_cvt_pk_bf16_f32 v{pk+k}, v{b+2*k}, v{b+2*k+1}" for k in range(8)]
        ef = ex[:2] + [x for p in zip(ex[2:], fm) for x in p] + fm[14:]
        wr = [self.gwr(c, F, h, pk + 4*h) for h in range(2)]
        if self.u8on: ef = self.u8(ef)
        if cv:
            z = lambda m, v: [x for p in zip(m, v) for x in p] + m[len(v):] + v[len(m):]
            n2 = self.o.get('zc', 2)
            v2 = merge(m2, cp[:n2], 5, 6)
            S = lambda n: (lambda: self.stamp(self.tcur, n))
            return [self.PC(), 's_waitcnt lgkmcnt(0)', S('z0')] + z(cv[:16], m1) + [prio, S('z1')] + merge(ef + rc, side, at, step) + [self.PC(), S('z2')] + z(cv[16:], v2) + [prio, S('z3')] + cp[n2:], wr
        r = rc[:2]
        for n in range(2, 16):
            r += [rc[n], m2[n-2]]
            if n >= 5 and n % 2: r.append(cp[(n-5)//2])
        return merge(m1 + ef + r + m2[14:] + cp[6:], side, at, step), wr
    def gflag(self, t, pub):
        def f():
            t.wait_op(*pub)
            t(f"s_mov_b64 exec, {sWM}")
            t(f"buffer_store_dword v{vFL}, off, {sWS}, s8 sc1")
            t("s_mov_b64 exec, -1")
        return f
    def PS(self): return f"s_setprio {self.o['prioS']}"
    def soff(self, o, F, gi): return o*16384 + F*2048 + gi*1024
    def rds(self, o, F, D, es): return [self.drd(o, F, gi, e, D) for e in es for gi in range(2)]
    def Y(self, t, c, o, F, exa=(), exb=(), exc=(), exc2=(), exd=(), ex0=(), at0=0, end=()):
        D = R0 + 32; Yv = R0 + 16; tmp = R0
        t(self.PY())
        self.run(t, merge((self.glu_half_pk if self.o.get('pk', 0) & 8 else self.glu_half)(c, F, 0), [list(ex0)], at0) + list(exa))
        self.stamp(t, f"gh{c}")
        self.run(t, merge(self.glu_half(c, F, 1), [self.rds(o, F, D, range(3))], 12) + list(exb))
        self.stamp(t, f"glu{c}")
        self.run(t, [self.PC()] + merge(self.cv(TT, D, Yv), [self.rds(o, F, D, (3, 4))], self.o.get('cvrd', 6)) + [self.PS()])
        self.stamp(t, f"cv{o}")
        self.run(t, self.si16(Yv, tmp, o, F, None, exc, exc2, exd) + list(end))
        self.stamp(t, f"si{o}")

    def Yc(self, t, c, o, F, exa=(), exr=(), exb=(), ex0=(), at0=0, exw=(), exm=(), end=()):
        D = [R0+x for x in (32, 36, 40, 44, 0,   4, 16, 20, 24, 28)]
        t(self.PY())
        self.run(t, merge(self.glu_half(c, F, 0), [list(ex0)], at0) + list(exa))
        self.stamp(t, f"gh{c}")
        self.run(t, merge(merge(self.glu_half(c, F, 1), [list(exb)], 30), [[self.drd(o, F, 0, e, D) for e in range(5)] + list(exr)], 12) + list(exw))
        self.stamp(t, f"glu{c}")
        self.run(t, [self.PC()] + merge(merge(self.cv(TT, D, R0+48, True), [list(exm)], 27), [[self.drd(o, F, 1, e, D) for e in range(5)]], self.o.get('cvrd', 5)) + [self.PX()] + list(end))
        self.stamp(t, f"cv{o}")

    def korder(self, o):
        grp = lambda Ss, split: [2*S + th for a, th in ([(0, 0), (2, 0), (0, 1), (2, 1)] if split else [(0, 0), (0, 1), (2, 0), (2, 1)]) for S in Ss[a:a+2]]
        if o == 0: return grp([0, 1, 2, 3], 0) + grp([4, 5, 6, 7], 0)
        first = 1 if o == 3 else 0
        return grp(list(range(first, 8, 2)), 0) + grp(list(range(1-first, 8, 2)), o == 3 and self.o.get('split'))
    def srd(self, o, p):
        s = self.korder(o)[p]
        return [f"ds_read_b64_tr_b16 {R(FR+4*(p%4)+2*u,2)}, v{(vTR, vTR1)[s % 2]} offset:{o*16384 + (s//2)*2048 + u*1024}" for u in range(2)]
    def pre_g2(self, o): return [self.srd(o, s) for s in range(4)]
    def mm2(self, o, q, m, acc):
        ko = self.korder(o); a = R(acc + 16*(ko[2*q] % 2) + 4*m, 4)
        return [f"v_mfma_f32_16x16x32_bf16 {a}, {V(WW+16*(ko[p]//2)+4*m,4)}, {R(FR+4*(p%4),4)}, {0 if q < 2 and p % 2 == 0 else a}" for p in (2*q, 2*q+1)]
    def out_ops(self, o, acc):
        P = TT; fl = self.o.get('stfl', 'sc1').replace('_', ' ')
        if o == 3 and 'stfl3' in self.o: fl = self.o['stfl3'].replace('_', ' ')
        cv = [[f"v_cvt_pk_bf16_f32 v{P+4*i+k}, v{R0+acc+8*i+2*k}, v{R0+acc+8*i+2*k+1}" for k in range(4)] for i in range(4)]
        wr = [f"ds_write_b128 v{vOW[i % 2]}, {V(P+4*i,4)} offset:{2048*(i//2)}" for i in range(4)]
        rd = [f"ds_read_b128 {V(P+16+4*i,4)}, v{vOR} offset:{i*1024}" for i in range(4)]
        st = [f"buffer_store_dwordx4 {V(P+16+4*i,4)}, v{vOG}, {sO}, s{12+i} offen {fl}" for i in range(4)]
        so = [f"s_mov_b32 s{12+i}, {o*16384 + i*4096}" for i in range(4)]
        if self.o.get('cvtprio') and o < 2: cv = [["s_setprio 2"] + c + [f"s_setprio {self.o['prioU']}"] for c in cv]
        return cv, wr, rd, st, so
    def out_sched(self, o, acc):
        cv, wr, rd, st, so = self.out_ops(o, acc)
        if (self.o.get('nost', 0) >> o) & 1: st = [None]*4
        d = self.o.get('dense', 0)
        if d == 1:
            ex = {0: [so], 1: [cv[0]], 2: [wr[0]], 3: [cv[1]], 4: [cv[2]], 6: [wr[1]], 7: [cv[3]], 8: [wr[2]], 10: [wr[3]], 13: [None], 14: [rd],
                  18: [st[0]], 20: [st[1]], 22: [st[2]], 24: [st[3]]}
            return ex
        if d == 2:
            ex = {0: [so], 1: [cv[0]], 2: [cv[1]], 4: [wr[0], wr[1]], 5: [cv[2]], 6: [cv[3]], 8: [wr[2], wr[3]], 12: [rd],
                  16: [st[0]], 18: [st[1]], 20: [st[2]], 22: [st[3]]}
            return ex
        if d == 6:
            return {0: [cv[0]], 1: [cv[1]], 2: [so[:2]], 4: [wr[0]], 5: [cv[2]], 6: [so[2:]], 8: [wr[1]], 12: [rd[:2]], 13: [cv[3]], 16: [wr[2]], 17: [st[0]],
                    20: [wr[3]], 22: [st[1]], 24: [rd[2:]], 28: [st[2]], 29: [st[3]]}
        if d == 7:
            return {0: [cv[0]], 1: [cv[1]], 2: [so[:2]], 4: [wr[0]], 5: [wr[1]], 6: [so[2:]], 7: [cv[2]], 8: [cv[3]], 10: [rd[:2]], 12: [wr[2]], 13: [wr[3]], 14: [st[0]],
                    16: [rd[2:]], 17: [st[1]], 20: [st[2]], 21: [st[3]]}
        if d == 4:
            return {0: [so], 2: [cv[0]], 4: [wr[0]], 5: [cv[1]], 6: [cv[2]], 8: [wr[1]], 10: [cv[3]], 12: [rd[:2]], 14: [wr[2]], 16: [st[0]],
                    18: [wr[3]], 19: [st[1]], 22: [rd[2:]], 26: [st[2]], 28: [st[3]]}
        if d == 5:
            return {0: [so], 1: [cv[0]], 2: [wr[0]], 3: [cv[1]], 4: [cv[2]], 6: [wr[1]], 7: [cv[3]], 8: [wr[2]], 10: [rd[:2]], 12: [wr[3]], 14: [st[0]],
                    16: [rd[2:]], 18: [st[1]], 20: [st[2]], 22: [st[3]]}
        if d == 3:
            return {0: [so], 2: [cv[0]], 4: [wr[0]], 5: [cv[1]], 6: [cv[2]], 8: [wr[1]], 9: [cv[3]], 10: [wr[2]], 16: [wr[3]], 20: [rd],
                    24: [st[0]], 26: [st[1]], 28: [st[2]], 30: [st[3]]}
        seq = [so, cv[0], wr[0], cv[2], wr[1], cv[3], wr[2], None, wr[3], None, rd, None, st[0], st[1], st[2], st[3]]
        ex = {2*k: [op] for k, op in enumerate(seq)}
        ex[5] = [cv[1]]
        return ex
    def U(self, t, o, acc, extra={}, nxt=None, late=None):
        mf = []; fill = {}
        if late: assert late[0] <= 10; fill[late[0]] = list(late[1])
        for g, ops in extra.items(): fill.setdefault(g, []).extend(ops)
        half = {}
        for g in range(32):
            f = self.flat(fill.get(g, [])); k = (len(f) + 1)//2 if g < 31 else len(f)
            if self.o.get('light') and g < 31:
                k = len(f); room = 0 if g % 4 == 2 else 8
                cost = lambda x: 99 if not isinstance(x, str) or x.startswith(('ds_write', 'buffer_store')) else 8 if x.startswith(('v_exp', 'v_rcp', 'buffer', 'ds_read_b128')) else 4
                while k > 1 and cost(f[k-1]) <= room: room -= cost(f[k-1]); k -= 1
            half[g] = f[:k]; half[g+0.5] = f[k:]
        for q in range(8):
            mf += [self.mm2(o, q, m, acc) for m in range(4)]
            for u in range(2):
                p = 2*q + 4 + u
                rd = self.srd(o, p) if p < 16 else (nxt[p-16] if nxt else None)
                if rd and u == 0: half[4*q+2.5] = half[4*q+2.5] + [rd]
                if rd and u == 1: half[4*q+3] = [rd] + half[4*q+3]
        self.weave2(t, mf, half)

    def barrier(self, t, name, *handles, lds=True):
        t.wait_op(*handles)
        if lds: t.wait_lds()
        self.stamp(t, name + "<")
        t.bars = getattr(t, 'bars', []) + [name]
        t("s_barrier")
        self.stamp(t, name + ">")
        if name == self.o.get('from'): t.steady = True
        if name == self.o.get('to'): t.steady = False

    def fladdr(self):
        return [f"v_bfe_u32 v{vFL}, v{vSW}, 4, 3", f"s_mov_b32 {sT0}, {FB}", f"v_lshl_add_u32 v{vFL}, v{vFL}, 2, {sT0}"]
    def gfaddr(self, F):
        return ["s_lshl_b32 s8, s2, 7", f"s_lshl_b32 {sT0}, {sQ}, 3", f"s_add_u32 s8, s8, {sT0}", f"s_add_u32 s8, s8, {FLG + 4*F}"]
    def signal(self, t, e, *handles):
        def f():
            t.wait_op(*[h for x in handles for h in (x if isinstance(x, list) else [x])])
            t(f"s_mov_b64 exec, {sWM}")
            t(f"ds_write_b32 v{vFL}, v{vFL} offset:{32*e}")
            t("s_mov_b64 exec, -1")
            t.sigs.append(e)
            self.stamp(t, f"S{e}")
        return f
    def ready_ld(self): return "s_load_dwordx4 s[12:15], s[28:29], 0"
    def ready_chk(self, t, tmp):
        def f():
            lab = f"L_rdy{t.name}"
            t(f"s_mov_b32 {sT0}, 0x40000")
            t(f"{lab}l:")
            t("s_and_b64 s[12:13], s[12:13], s[14:15]")
            t("s_and_b32 s12, s12, s13")
            t(f"s_cbranch_scc0 {lab}s")
            t(f"{lab}:")
            t.slow += [f"{lab}s:", f"    buffer_load_dwordx4 {V(tmp,4)}, off, {sDBG}, 0 sc1", "    s_waitcnt vmcnt(0)"] + \
                      [f"    v_readfirstlane_b32 s{12+k}, v{tmp+k}" for k in range(4)] + \
                      [f"    s_sub_u32 {sT0}, {sT0}, 1", f"    s_cbranch_scc0 {lab}l", f"    s_branch {lab}"]
        return f
    def peek(self, e, tmp): return f"ds_read_b32 {tmp}, v{vFL} offset:{32*(e % 8)}"
    def await_(self, t, e, tmp, mask, up=False):
        def f():
            lab = f"L_w{t.name}{e}"; t.waits.append((e, mask))
            self.stamp(t, f"W{e}<")
            if up: t("s_setprio 2")
            t(f"v_cmp_eq_u32 vcc, 0, {tmp}")
            t(f"s_and_b32 {sT0}, vcc_lo, {mask}")
            t(f"s_cbranch_scc1 {lab}s")
            t(f"{lab}:")
            if up: t(f"s_setprio {self.o['prioU']}")
            self.stamp(t, f"W{e}>")
            t.slow += [f"{lab}s:", "    " + self.peek(e, tmp), "    s_waitcnt lgkmcnt(0)", f"    v_cmp_eq_u32 vcc, 0, {tmp}", "    s_nop 0",
                       f"    s_and_b32 {sT0}, vcc_lo, {mask}", f"    s_cbranch_scc1 {lab}s", f"    s_branch {lab}"]
        return f
    def publish(self, t, F, acc, st=8):
        hs = []
        if self.o.get('nopub'): return hs
        for half in range(2):
            hs.append(t(f"buffer_store_dwordx4 {R(acc+st*half,4)}, v{vSW}, {sWS}, {sEX} offen offset:{F*2048 + half*1024} sc1"))
        return hs

    def finish(self, t):
        if self.o.get('probe') or self.stamps:
            self.stamp(t, "end0")
            t.wait_vm()
            self.stamp(t, "end1")
        if self.o.get('probe'):
            t("s_waitcnt lgkmcnt(0)")
            t("s_sub_u32 s96, s96, s98")
            t("s_lshl_b32 s96, s96, 4")
            if t.name != self.o.get('pgrp', 'L'): t("s_mov_b32 s96, 0")
            if 'pwg' in self.o:
                t(f"s_cmp_eq_u32 s2, {self.o['pwg']}")
                t("s_cselect_b32 s96, s96, 0")
            t("s_memrealtime s[98:99]")
            t("s_waitcnt lgkmcnt(0)")
            t("s_add_u32 s96, s96, s98")
            lab = f"L_spin{t.name}"
            t(lab + ":")
            t("s_memrealtime s[100:101]")
            t("s_waitcnt lgkmcnt(0)")
            t("s_sub_u32 s100, s100, s96")
            t("s_cmp_lt_i32 s100, 0")
            t(f"s_cbranch_scc1 {lab}")
        if self.stamps:
            t("s_memrealtime s[100:101]")
            t("s_waitcnt lgkmcnt(0)")
            t(f"s_lshl_b32 {sT0}, s2, 3"); t(f"s_add_u32 {sT0}, {sT0}, {sWAVE}"); t(f"s_lshl_b32 {sT0}, {sT0}, 7")
            t(f"v_mov_b32 {R(1)}, 0")
            for k, r in [(k, STAMP0+2*k) for k in range(t.nstamp)] + [(30, 98), (31, 100)]:
                t(f"v_mov_b32 {R(0)}, s{r}")
                t(f"buffer_store_dword {R(0)}, {R(1)}, {sWS}, {sT0} offen offset:{4*k}")
        t("s_endpgm")

    def ring2(self):
        r2 = {'s': R(80), 'p': R(81), 'x': R(82)}
        x1 = [[self.slot('x1', 2*i+j, r2) for j in range(2)] for i in range(2)]
        x2 = [[self.slot('x2', 2*i+j, r2) for j in range(2)] for i in range(2)]
        s1 = [[(sSQ, 16384 + 2048*i + 1024*j, R(80)) for j in range(2)] for i in range(2)]
        sp = [self.slot('p', j, r2) for j in range(2)]
        top = [(sSQ, (2+j)*16384 + 3072, R(80)) for j in range(2)]
        return x1 + [sp, top] + s1 + x2 + s1 + [top] + x1 + [sp] + x2
    def pubops(self, t, F, hs, r=32, d=4):
        rd = [f"ds_read_b128 {R(r+d*half,4)}, v{vGW} offset:{F*GSZ + 2304*half}" for half in range(2)]
        st = [lambda half=half: hs.append(t(f"buffer_store_dwordx4 {R(r+d*half,4)}, v{vSW}, {sWS}, {sEX} offen offset:{F*2048 + half*1024} sc1")) for half in range(2)]
        return rd, st
    def path_L(self, t):
        O = self.o; self.tcur = t
        self.stamp(t, 'pst')
        regs = {'s': (R(80), R(81)), 'g': (R(82), V(TT+33))}
        ring = [[self.slot(k, 2*i+j, regs, F) for j in range(2)] for k, F in (('s', 0), ('g', 0), ('s', 1)) for i in range(2)]
        D = len(ring)
        pairs = [ring[s % D] for s in range(16)]
        pend = {s: self.w0[s] if s in self.w0 else self.wdma(t, 1, s, pairs[s]) for s in range(max(O['pre'], len(self.w0)))}
        self.stamp(t, "wiss")
        t("s_setprio 2")
        self.barrier(t, "B0", *self.x01.get(t.name, []))
        assert O.get('b1', 36) >= 32 and O['pause'] == 2 and O['ybar'] >= 16
        hk = {O.get('b1', 36) - 0.5: [lambda: self.barrier(t, "B1")], 24: [lambda: self.barrier(t, "B0b", lds=False), self.PC()]}
        b0b = hk.pop(24) if O.get('pause') else None
        if 'ybar' in O: hk.setdefault(O['ybar'], []).insert(0, lambda: self.barrier(t, "B0a", lds=False))
        tl = self.tload(TT, V(TT+34), V(TT+35))
        for k in range(9): hk.setdefault(max(41.5, O.get('b1', 36) + 1.5) + 2*k, []).append(tl[2*k:2*k+2])
        self.g1p(t, pairs, pend, D, hk, b0b)
        self.stamp(t, "g1p")
        t(self.PY())
        hs = [self.glu_half(0, 0, 0, 32), self.glu_half(0, 0, 1, 32), self.glu_half(1, 0, 0), self.glu_half(1, 0, 1)]
        v01 = [x for h in hs for x in h[:-1]]
        if O.get('u8', 0) & 1: v01 = self.u8(v01)
        nlate = O.get('vlate', 0)
        self.run(t, v01[:len(v01)-nlate])
        self.run(t, self.gfaddr(0))
        t(f"s_add_u32 {sT1}, {sXROW}, {2*16384}")
        t(f"v_add_u32 {R(73)}, {sT1}, v{vXL}")
        t(f"v_add_u32 {R(74)}, 16384, {R(73)}")
        t(f"s_sub_u32 s18, {sT1}, {sSQ}"); t("s_add_u32 s18, s18, 16384")
        t(f"s_bfe_u32 {sT0}, s2, 0x40003")
        t(f"s_lshl_b32 {sT0}, {sT0}, 13")
        t(f"s_lshl_b32 {sT1}, {sQ}, 11")
        t(f"s_add_u32 {sT0}, {sT0}, {sT1}")
        t(f"s_add_u32 {sT0}, {sT0}, {W2T}")
        t(f"v_lshl_add_u32 {R(72)}, v{vXL}, 1, {sT0}")
        t(f"s_lshl_b32 {sT1}, {sSQ}, 1"); t(f"s_sub_u32 s11, {sT0}, {sT1}")
        self.run(t, self.fladdr())
        self.run(t, self.wrapaddr())
        a, b, c = R(4), R(5), R(6)
        self.run(t, [f"v_subrev_u32 {a}, {sSQ}, v{vSW}", f"v_lshrrev_b32 {b}, 3, {a}", f"v_xor_b32 {c}, {a}, {b}",
                     f"v_and_b32 {c}, 0x70, {c}", f"v_and_b32 {b}, 0x70, {b}", f"v_lshl_add_u32 {c}, {b}, 5, {c}", f"s_lshl_b32 {sT2}, {sQ}, 7", f"v_add_u32 v{vOG}, {sT2}, {c}",
                     f"v_lshrrev_b32 {b}, 3, {a}", f"v_and_b32 {b}, 32, {b}", f"v_xor_b32 {a}, {a}, {b}",
                     f"v_lshrrev_b32 {b}, 4, {a}", f"v_and_b32 {b}, 0x30, {b}", f"v_xor_b32 {b}, {a}, {b}", f"v_and_b32 {b}, 0x70, {b}", f"v_and_b32 {a}, 0xf0, {a}",
                     f"v_lshl_add_u32 {a}, {a}, 3, {b}", f"s_add_u32 {sT1}, {sXQ}, {XB + XSZ}", f"v_add_u32 v{vOW[0]}, {sT1}, {a}",
                     f"s_sub_u32 s9, {sT1}, {sSQ}",
                     f"s_mul_i32 s10, {sQ}, {32768-4096}", f"s_add_u32 s10, s10, {W2T - SB}"])
        self.stamp(t, "glu1")
        Dd, Yv, tm = R0 + 32, R0 + 16, R0
        PK = f"v{vXL}"
        t(self.PS())
        if O.get('rdy', 0) == 0: t(self.ready_ld())
        self.barrier(t, "B1b", lds=False)
        x2 = []; x3 = []
        x3at = O.get('x3at', 0); pfat = O.get('pfat', 0)
        def x3q(q, a=R(74)):
            t(f"s_add_u32 m0, {sXQ}, {XB + q*32}")
            x3.append(t(f"buffer_load_dwordx4 {a}, {sX}, 0 offen offset:{q*1024} nt lds"))
        def x2q(q):
            t(f"s_add_u32 m0, {sXQ}, {X2B + q*32}")
            x2.append(t(f"buffer_load_dwordx4 {R(73)}, {sX}, 0 offen offset:{q*1024} nt lds"))
        n2 = O.get('x2n', 4)
        self.run(t, merge(v01[len(v01)-nlate:], [lambda q=q: x2q(q) for q in range(n2)], -1, 4) if nlate else [lambda q=q: x2q(q) for q in range(n2)])
        self.barrier(t, "B2", lds=False)
        self.run(t, [h[-1] for h in hs[:2]])
        for q in range(n2, min(4, n2+2)): x2q(q)
        self.run(t, [h[-1] for h in hs[2:]])
        for q in range(n2+2, 4): x2q(q)
        Dd = [R0+x for x in (4, 12, 16, 20, 24,   36, 44, 28, 64, 68)]; Y0 = R0 + 48; T0 = R0 + 32
        self.run(t, self.rds(0, 0, Dd, range(5)))
        self.run(t, [self.PC()] + self.cv(TT, Dd, Y0) + [self.PS()])
        self.stamp(t, "cv0")
        t(self.ready_ld())
        s0 = [x for x in self.si16(Y0, T0, 0, 0) if x]; e0 = O.get('e0L', 0)
        pub = []
        pfa = lambda a: [f"s_mov_b32 m0, {sSPQ}", f"buffer_load_dword {a}, {sWS}, 0 offen sc1 lds"]
        pL = O.get('pubL', 1); xg = O.get('x3g', 4)
        prd, pst = self.pubops(t, 0, pub, 52, 8) if pL >= 2 else self.pubops(t, 0, pub, FR if pL else 0)
        self.run(t, [None if pL else prd] + merge(s0[:e0], [lambda q=q: x3q(q) for q in range(4)] if xg < 0 else [], 0, max(1, e0//4)))
        self.stamp(t, "si0")
        t(self.PX())
        t("s_waitcnt lgkmcnt(0)")
        self.ready_chk(t, R0+8)()
        pg = O.get('pfg', 26)
        self.run(t, [None if pL else pst, self.signal(t, 3, x2), self.peek(3, PK), self.await_(t, 3, PK, 0x0f)])
        self.run(t, self.pre_g1(2))
        ex = {pg: [f"v_lshl_add_u32 {PK}, v{vSW}, 1, s11"] + pfa(PK)}
        if xg >= 0:
            ex[0] = [f"v_add_u32 {PK}, s18, v{vSW}", "s_mov_b32 exec_lo, 0", f"v_xor_b32 {PK}, 16, {PK}", "s_mov_b32 exec_lo, -1"]
            for q in range(4): ex[xg + 2*q] = [lambda q=q: x3q(q, PK)]
        if pL == 1: ex.update({27: [prd], 30: [pst[0]], 31: [pst[1]]})
        self.g1(t, 2, ex)
        self.stamp(t, "g1_2")
        t(self.PY())
        g2, w2g = self.glu16(2, 0, T0)
        v = s0[e0:-2] + g2; n = len(v)
        if O.get('u8', 0) & 2: v = self.u8(v)
        v = merge(v, [[f"s_setprio {O.get('prioV2', 1)}", self.signal(t, 4, x3)], [self.peek(4, PK)] + (prd if pL == 3 else []), [self.await_(t, 4, PK, 0x0f)] + self.pre_g1(3) + (prd if pL == 2 else []) + (pst if pL == 3 else [])], n - O.get('s4', 48), 14)
        self.run(t, v + [self.PX()])
        self.stamp(t, "glu2")
        def w2(k):
            o = [f"buffer_load_dwordx4 {V(WW+4*k,4)}, v{vSW}, {sWS}, s10 offen offset:{1024*(k % 4)} sc1"]
            return o + (["s_add_u32 s10, s10, 4096"] if k % 4 == 3 else [])
        DW = Wt(11, 0)
        D1 = [R0+32, R0+36, WW+72, WW+80, WW+88,   R0+40, R0+44, WW+76, WW+84, WW+92]; r1 = self.rds(1, 0, D1, range(5))
        leave = [f"s_cmp_eq_u32 {sJ}, 125", "s_cbranch_scc1 L_end"]
        ex = {0: [w2g[0]], 4: [w2g[1]], 8: [s0[-2]], 12: [s0[-1]], O.get('gfL', 5): [self.gflag(t, pub)], max(17, O.get('gfL', 5) + 2): leave, 13: [self.signal(t, 2)],
              24.5: [r1[0:2]], 25: [r1[2:4]], 26.5: [r1[4:6]], 27: [r1[6:8]], 28.5: [r1[8:]], 29: [f"v_xor_b32 v{vTR1}, 32, v{vTR}"]}
        gl = [7.5, 9, 10, 13.5, 14, 16, 18, 20, 22, 24, 26, 28, 30, 31]
        if pL == 2:
            del ex[O.get('gfL', 5)], ex[17]
            gl = [2, 5, 6, 9, 10, 14, 16, 18, 20, 22, 24, 26, 28]; ex.update({30: [pst[0]], 31: [pst[1]]})
        gl = sorted(gl + [19, 23, 15][:O.get('w2x', 0)])
        for k, g in enumerate(gl):
            assert g >= 8*(k//8) + 7
            ex.setdefault(g, []).append(w2(k))
        nw = len(gl); na = nw + O.get('w2a', 4); assert na <= 18; nb = min(22, na + O.get('w2b', 4))
        self.g1(t, 3, ex, wskip=True)
        self.stamp(t, "g1_3")
        pl = f"s_setprio {O.get('prioL3', 1)}"
        self.u8on = bool(O.get('u8', 0) & 16)
        g3, w3g = self.glu16(3, 0, R0, self.cv(TT, D1, R0+48), pl, [w2(k) for k in range(nw, na)], 4, 10)
        self.run(t, g3 + w3g + ([self.gflag(t, pub), leave] if pL == 2 else []))
        self.stamp(t, "glu3")
        self.tcur = t
        rr = self.rds(2, 0, DW, range(5))
        self.run(t, merge(self.si16(R0+48, R0+32, 1, 0, self.cv(TT, DW, R0+16), [], rr[:5] + [self.peek(2, PK)], rr[5:],
                          pos=(0, O.get('pb', 20), O.get('pc', 30)), pre=[self.await_(t, 2, PK, 0xff)] + self.pre_g2(0)), [w2(k) for k in range(na, nb)], 3, 11))
        self.stamp(t, "si1")
        t(self.PX())
        up = O.get('cvtprio')
        ex = {1: [f"s_setprio {O['prioU']}"], 5: [self.signal(t, 5)],
              30: [f"v_xor_b32 v{vOW[1]}, 64, v{vOW[0]}", f"v_add_u32 v{vOR}, s9, v{vSW}"]}
        lg_ = [0, 1, 4, 6, 8, 9, 12, 13, 16, 17]; assert nb == 22
        for k, g in zip(range(nb, 32), lg_): ex.setdefault(g, []).append(w2(k))
        self.u8on = bool(O.get('u8', 0) & 64)
        s2 = self.si16(R0+16, R0, 2, 0); v2 = [x for x in s2[:-2] if isinstance(x, str)]
        k = 0; cap = O.get('mix', 0)
        for g in range(32):
            room = cap - (12 if g in lg_ else 0) - (20 if g % 4 == 3 or g == 22 else 12 if g % 4 == 2 else 4)
            while k < len(v2) and room >= (8 if v2[k].startswith(('v_exp', 'v_rcp')) else 4):
                room -= 8 if v2[k].startswith(('v_exp', 'v_rcp')) else 4
                ex.setdefault(g, []).append(v2[k]); k += 1
        ex.setdefault(19, []).append(self.peek(5, PK)); ex.setdefault(22, []).insert(0, self.await_(t, 5, PK, 0x0f, up))
        self.U(t, 0, 32, ex, self.pre_g2(1))
        self.stamp(t, "u0")
        t(f"s_setprio {O.get('prioS2', 1)}")
        self.run(t, v2[k:] + s2[-2:])
        self.stamp(t, "si2")
        lg = O.get('late', 13)
        for o in (1, 2, 3):
            O['prioU'] = O.get(f'prioU{o}', O['prioU']); up = O['cvtprio'] = O['prioU'] < 2
            t(f"s_setprio {O['prioU']}")
            lg = O.get(f'late{o}', O.get('late', 13)); O['dense'] = O.get(f'dense{o}', O.get('denseU', 3 if lg > 9 else 0))
            ex = self.out_sched(o-1, 32*(o % 2))
            if o == 1: ex.setdefault(10, []).append(self.signal(t, 0))
            em = (5, 0, 1)[o-1]
            ex.setdefault(7, []).insert(0, self.peek(em, PK))
            if o < 3:
                en, mk = ((0, 0x0f), (6, 0xf0))[o-1]
                ex.setdefault(23, []).append(self.peek(en, PK))
                ex.setdefault(25, []).insert(0, self.await_(t, en, PK, mk, up))
            if o == 3:
                cv, wr, rd, st, so = self.out_ops(3, 0)
                fin = [so, cv[0], wr[0], cv[1], wr[1], cv[2], wr[2], cv[3], rd[:2], wr[3], st[0], rd[2:], st[1:]]
                if O.get('split'):
                    assert O['dense'] in (5, 7)
                    for g, op in ((24, [so, cv[0]]), (25, wr[0]), (26, cv[1]), (27, wr[1]), (29, rd[:2])): ex.setdefault(g, []).append(op)
                    fin = [st[0], cv[2], wr[2], cv[3], wr[3], st[1], rd[2:], st[2:]]
            self.U(t, o, 32*((o+1) % 2), ex, self.pre_g2(o+1) if o < 3 else None, late=(lg, [self.await_(t, 8 + em, PK, 0xf0, up)]))
            self.stamp(t, f"u{o}")
        self.run(t, fin)
        self.finish(t)

    def path_F(self, t):
        O = self.o; self.tcur = t; self.u8on = False
        self.stamp(t, 'pst')
        regs = {'s': (R(80), R(81)), 'g': (R(82), f"v{vTR}")}
        t(f"v_mov_b32 v{vTR}, {V(TT+33)}")
        ring = [[self.slot(k, 2*i+j, regs, 1) for j in range(2)] for k in ('s', 'g') for i in range(2)]
        if O.get('DF', 4) > 4:
            assert O.get('b1', 36) >= 35 + 4*(O['DF'] - 5)
            ring += [[self.slot('s', 2*i+j, regs, 0) for j in range(2)] for i in range(O['DF'] - 4)]
        D = len(ring)
        pairs = [ring[s % D] for s in range(16)]
        if 'F' not in self.xb0:
            yp = O.get('yprio', 0); early = self.dwh is not None
            if early: self.tbuild2(t); self.stamp(t, "tb")
            if yp == 1: t("s_setprio 3")
            self.barrier(t, "B0", *self.x01.get('F', []), lds=False)
            if 'ybar' in O:
                t("s_setprio 3"); self.barrier(t, "B0a", lds=False)
            self.dwh = self.dwh or self.dwdma(t)
            if yp == 2: t("s_setprio 3")
            pF = [f"v_subrev_u32 {R(11)}, {16384-256}, {R(11)}", f"buffer_load_dword {V(254)}, {R(11)}, {sW1}, 0 offen"]
            if 'pr0' in O: self.run(t, [f"s_mov_b32 {sT0}, {120*1024}", f"buffer_load_dword {V(252)}, {R(63)}, {sW1}, {sT0} offen"])
            if O.get('pF2') == 1: self.run(t, pF)
            self.xb0['F'] = self.xhalf(t, 1)
            if O.get('pF2') == 2: self.run(t, pF)
            if O.get('c2'):
                t("s_getpc_b64 s[16:17]"); t("L_pc2:")
                t(f"s_sub_u32 s16, s16, L_pc2-{NAME}_kernel"); t("s_subb_u32 s17, s17, 0")
                t(f"s_mov_b32 s18, L_code_end-{NAME}_kernel"); t("s_mov_b32 s19, 0x20000")
                t(f"s_bfe_u32 {sT0}, s2, 0x30003"); t(f"s_lshl_b32 {sT0}, {sT0}, 12"); t(f"s_lshl_b32 {sT1}, {sQ}, 10"); t(f"s_add_u32 {sT0}, {sT0}, {sT1}")
                t(f"v_lshl_add_u32 {R(9)}, {R(0)}, 4, {sT0}")
                t(f"buffer_load_dword {V(255)}, {R(9)}, s[16:19], 0 offen")
            t("s_setprio 0")
            self.stamp(t, "yiss")
        if not early: self.tbuild2(t); self.stamp(t, "tb")
        tf = O.get('tF', 0)
        if tf == 0: self.run(t, self.tload(TT, R(20), R(21)))
        if tf >= 3: self.run(t, [f"v_mov_b32 {V(TT+34)}, {R(20)}", f"v_mov_b32 {V(TT+35)}, {R(21)}"])
        self.barrier(t, "B0b", *self.xb0['F'], lds=False)
        if tf == 4: self.run(t, ["s_setprio 3"] + self.tload(TT, V(TT+34), V(TT+35))[:10] + ["s_setprio 0"])
        self.barrier(t, "B1")
        pend = {s: self.wdma(t, 1, s, pairs[s]) for s in range(2)}
        if tf == 1: self.run(t, self.tload(TT, R(20), R(21)) + ["s_waitcnt lgkmcnt(0)"])
        for s in range(2, D): pend[s] = self.wdma(t, 1, s, pairs[s])
        if tf == 2: self.run(t, self.tload(TT, R(20), R(21)))
        self.stamp(t, "wiss")
        t(f"s_setprio {O['prioP']}")
        hk = {O.get('b1b', 42) - 0.5: [lambda: self.barrier(t, "B1b", lds=False)], O.get('b2', 57): [lambda: self.barrier(t, "B2")], 60: [self.fladdr()], 61: [self.gfaddr(1)]}
        if tf == 3:
            tl = self.tload(TT, V(TT+34), V(TT+35))
            for k, g in enumerate((45.5, 47.5, 49.5, 51.5, 52, 52.5, 53.5, 54, 54.5)): hk.setdefault(g, []).append(tl[2*k:2*k+2])
        if tf == 4:
            tl = self.tload(TT, V(TT+34), V(TT+35))[10:]
            for k, g in enumerate((48, 50, 52, 54)): hk.setdefault(g, []).append(tl[2*k:2*k+2])
        self.g1p(t, pairs, pend, D, hk)
        self.stamp(t, "g1p")
        PK = f"v{vTR}"
        self.u8on = bool(O.get('u8', 0) & 32)
        t(self.PY())
        self.run(t, self.glu_half(0, 1, 0, 32, R0+72) + self.glu_half(0, 1, 1, 32, R0+76))
        pub = []; Y0 = R0 + 48; T0 = R0 + 32
        s0 = [x for x in self.si16(Y0, T0, 0, 1) if x]; e0 = O.get('e0F', 32)
        pb = lambda: pub.extend(self.publish(t, 1, 72, 4)); pf_ = O.get('pubF', 1)
        self.Yc(t, 1, 0, 1, exm=[self.peek(3, PK)], exb=[pb] if pf_ == 0 else [],
                end=[self.PS()] + merge(s0[:e0], [[pb if pf_ == 1 else None, self.await_(t, 3, PK, 0x0f)] + self.pre_g1(2)], max(0, e0 - 16)) + [self.PX()])
        self.stamp(t, "si0")
        leave = [f"s_cmp_eq_u32 {sJ}, 125", "s_cbranch_scc1 L_end"]
        ex = {6: [self.wrapaddr()]}
        if pf_ == 2:
            prd, pst = self.pubops(t, 1, pub, FR); ex.update({27: [prd], 30: [pst[0]], 31: [pst[1]]})
        if pf_ == 3: prd, pst = self.pubops(t, 1, pub, 52, 8)
        self.g1(t, 2, ex)
        self.stamp(t, "g1_2")
        t(self.PY())
        self.u8on = False
        g2, w2g = self.glu16(2, 1, T0)
        v = s0[e0:-2] + g2; n = len(v)
        if O.get('u8', 0) & 4: v = self.u8(v)
        self.run(t, merge(v, [[f"s_setprio {O.get('prioV2', 1)}", self.peek(4, PK)] + ([self.gflag(t, pub), leave] if pf_ < 2 else []), [self.await_(t, 4, PK, 0x0f)] + self.pre_g1(3) + (prd if pf_ == 3 else [])], n - 34, 14) + [self.PX()])
        self.stamp(t, "glu2")
        G4L, G4F = WW + 116, WW + 36
        poll = [f"s_add_u32 s9, s8, 124", "s_load_dwordx2 s[10:11], s[24:25], s9"]
        TL = WW; DA = WW + 36; DB = WW + 76
        D1 = [R0+32, R0+36, WW+44, WW+52, WW+60,   R0+40, R0+44, WW+48, WW+56, WW+64]; r1 = self.rds(1, 1, D1, range(5))
        tl = self.tload(TL, f"v{vXL}", R(83))
        ex = {0: [w2g[0]], 4: [w2g[1]], 8: [s0[-2]], 12: [s0[-1]], 25: [self.signal(t, 2)],
              1: [f"v_add_u32 {R(83)}, 16384, v{vXL}", f"s_mov_b32 {sT3}, 0x40000", f"s_lshr_b32 {sT1}, s0, 4"], O.get('pollat', 14): [poll]}
        if pf_ == 2: ex[5] = [self.gflag(t, pub)]; ex[9] = leave
        for k, g in enumerate((9.5, 10, 15.5, 16, 17.5, 18, 19.5, 20, 21.5)): ex.setdefault(g, []).append(tl[2*k:2*k+2])
        for k, g in enumerate((22, 23.5, 24, 26.5, 27)): ex.setdefault(g, []).append(r1[2*k:2*k+2])
        def check():
            t("s_waitcnt lgkmcnt(0)")
            t("L_poll:")
            t("s_min_u32 s10, s10, s11")
            t("s_cmp_eq_u32 s10, 0")
            t("s_cbranch_scc1 L_again")
            t("L_got:")
            t.slow += ["L_again:", f"    buffer_load_dwordx2 {V(G4F,2)}, off, {sWS}, s9 sc1", "    s_waitcnt vmcnt(0)",
                       f"    v_readfirstlane_b32 s10, v{G4F}", f"    v_readfirstlane_b32 s11, v{G4F+1}",
                       f"    s_sub_u32 {sT3}, {sT3}, 1", "    s_cbranch_scc0 L_poll", "    s_branch L_got"]
            t(f"s_add_u32 s9, {sEX}, 16384")
            self.stamp(t, "poll")
        g4ld = [f"buffer_load_dwordx4 {V((G4L, G4F)[k//2]+4*(k%2),4)}, v{vSW}, {sWS}, s9 offen offset:{k*1024} sc1" for k in (2, 3, 0, 1)]
        late = O.get('lateG4', pf_ == 3)
        if pf_ == 3: ex.update({5: [pst[0]], 9: [pst[1]], 30: [self.gflag(t, pub)], 31: leave})
        if late: del ex[O.get('pollat', 14)]
        else:
            ex.setdefault(26, []).append(check)
            for k, g in enumerate((28, 30, 31)): ex.setdefault(g, []).append(g4ld[k])
        self.g1(t, 3, ex, wskip=True)
        self.stamp(t, "g1_3")
        self.u8on = bool(O.get('u8', 0) & 8)
        g3, w3g = self.glu16(3, 1, R0, self.cv(TT, D1, R0+48), f"s_setprio {O.get('prioG3', 0)}", [poll] if late else [g4ld[3]], O.get('pl', 40) if late else 4)
        self.run(t, g3 + ([check] if late else []) + w3g)
        self.stamp(t, "glu3")
        t(f"s_setprio {O.get('prioF1', 1)}")
        YA, YB = R0 + 64, R0 + 48
        TM = R0 + 16
        rd = lambda o, F, D: (self.rds(o, F, D, range(5))[:5], self.rds(o, F, D, range(5))[5:])
        P = (O.get('pa', 8), O.get('pb', 20), O.get('pc', 30))
        gF = [self.gwr(4, 1, 0, G4F), self.gwr(4, 1, 1, G4F+4)]
        gL = [self.gwr(4, 0, 0, G4L), self.gwr(4, 0, 1, G4L+4)]
        st1 = self.si16(YB, TM, 1, 1, self.cv(TT, DB, YA), [], *rd(2, 1, DB), pos=P, pre=[] if late else gF) + [self.signal(t, 5)]
        self.run(t, merge(st1, g4ld if late else [], O.get('g4a', 2), O.get('g4s', 8)))
        b, c = rd(3, 1, DA)
        self.run(t, self.si16(YA, TM, 2, 1, self.cv(TT, DA, YB), gF if late else [], b, c + [self.peek(5, PK)], pos=(14, 32, 37) if late else P,
                              pre=[self.await_(t, 5, PK, sT1)] + gL) + [self.signal(t, 0)])
        self.run(t, self.si16(YB, TM, 3, 1, self.cv(TL, DB, YA), [], *rd(3, 0, DB), pos=P) + [self.signal(t, 6)])
        self.stamp(t, "c3F")
        self.run(t, self.si16(YA, TM, 3, 0) + [self.signal(t, 1)])
        self.finish(t)

    def build(self):
        orig = asmlib.Trace.__call__
        o = self.o
        def call(tr, text, orig=orig):
            d = o.get('drop' + getattr(tr, 'name', ''))
            if d and getattr(tr, 'steady', False) and re.search(d, text): return asmlib.Ins('s_nop 0')
            return orig(tr, text)
        asmlib.Trace.__call__ = call
        try: return self.build2()
        finally: asmlib.Trace.__call__ = orig
    def build2(self):
        t = Trace()
        self.prologue(t)
        t(f"s_cmp_ge_u32 {sWAVE}, 4")
        t("s_cbranch_scc1 L_F")
        tl = Trace(t); tl.nstamp = t.nstamp; tl.stamp_names = list(t.stamp_names); tl.name = 'L'; tl.slow = []; tl.sigs = []; tl.waits = []; tl.vm = list(self.vm0['L']); self.dwh = None
        self.path_L(tl)
        tf = Trace(t); tf.nstamp = t.nstamp; tf.stamp_names = list(t.stamp_names); tf.name = 'F'; tf.slow = []; tf.sigs = []; tf.waits = []; tf.vm = list(self.vm0['F']); self.dwh = self.dwh2.get('F')
        self.path_F(tf)
        self.names = {'L': tl.stamp_names, 'F': tf.stamp_names}
        assert tl.bars == tf.bars and not any('s_barrier' in x for x in t.out), (tl.bars, tf.bars)
        for tr, who in ((tl, 0x0f), (tf, 0xf0)):
            for e, mask in tr.waits:
                if mask == sT1: mask = 0x0f
                if mask & 0x0f: assert e % 8 in tl.sigs, (e, mask)
                if mask & 0xf0: assert e % 8 in tf.sigs, (e, mask)
        head = open('cdna_kernels/' + NAME + '.s.ref').read().split('\n')
        hdr = [x for x in head if x.startswith(';') and '@launch' not in x]
        s = '\n'.join(hdr) + f"\n; @launch grid=({NWG},1,1) block=(512,1,1) lds={LDS}\n"
        s += f""".amdgcn_target "amdgcn-amd-amdhsa--gfx950"
.text
.globl {NAME}_kernel
.p2align 8
.type {NAME}_kernel,@function
{NAME}_kernel:
"""
        s += '\n'.join(t.out) + '\n' + '\n'.join(tl.out + tl.slow) + '\nL_F:\n' + '\n'.join(tf.out + tf.slow) + helper(self.stamps) + '\nL_end:\n    s_endpgm\nL_code_end:\n'
        s += f""".section .rodata,"a"
.p2align 6
.amdhsa_kernel {NAME}_kernel
  .amdhsa_next_free_vgpr 256
  .amdhsa_next_free_sgpr 102
  .amdhsa_accum_offset 256
  .amdhsa_group_segment_fixed_size 0
  .amdhsa_kernarg_size 56
  .amdhsa_user_sgpr_count 2
  .amdhsa_user_sgpr_kernarg_segment_ptr 1
  .amdhsa_system_sgpr_workgroup_id_x 1
.end_amdhsa_kernel
"""
        return s

SETS = {
 'x': ['start', 'karg', 'B0>', 'k3', 'k7', 'g1p', 'B2>', 'W3>', 'g1_2', 'glu2', 'g1_3', 'glu3', 'si1', 'u0', 'u1', 'u2', 'u3', 'end1'],
 'all': ['start', 'B2>', 'W3>', 'si0', 'g1_2', 'glu2', 'g1_3', 'glu3', 'si1', 'u0', 'si2', 'W13<', 'W13>', 'u1', 'c3F', 'S1', 'W8<', 'W8>', 'u2', 'W9<', 'W9>', 'u3', 'end0', 'end1'],
 'fine': ['start', 'B2>', 'g1_3', 'z0', 'z1', 'z2', 'z3', 'glu3', 'si1', 'u0', 'end1'] + [x+'10' for x in 'abcdegh'] + [x+'11' for x in 'abcdegh'],
 'head': ["start", "karg", "yiss", "tb", "wiss", "B0<", "B0>", "B0b<", "B0b>", "B1>", "k0", "k3", "k7", "g1p", "gh1", "glu1", "cv0", "si0", "B1b>", "B2<", "B2>", "W3>", "end1"],
 'mid': ["start", "B2>", "cv0", "W3>", "gh1", "glu1", "si0", "g1_2", "gh2", "glu2", "cv1", "S4", "W12<", "W12>", "S2", "S6", "W2>", "W6<", "W6>", "g1_3", "glu3", "si1", "si2", "S7", "end1"],
 'tail': ["start", "B2>", "g1_3", "glu3", "si1", "si2", "W7<", "W7>", "S7", "S5", "W5<", "W5>", "c3F", "u0", "u1", "u2", "u3", "S0", "S1", "W0<", "W0>", "W1<", "W1>", "end0", "end1"],
 'min': ["start", "B2>", "W3>", "g1_2", "g1_3", "u0", "u3", "end1"],
}
def emit(name, opts, sset=None, d='gen'):
    o = dict(opts)
    if sset: o['only'] = SETS[sset]
    g = Gen(stamps=bool(sset), opts=o)
    open(f'code/{d}/{name}.s', 'w').write(g.build())
    if sset: json.dump(g.names, open(f'code/{d}/{name}.json', 'w'))

BASE = {'pf': 5, 'pF2': 2, 'pre': 4, 'ybar': 24, 'pause': 2, 'late': 9, 'tF': 0, 'DF': 5, 'vlate': 30, 'cvtprio': 0, 'prioU': 2, 'prioG3': 0, 'prioS2': 1, 'prioU1': 2, 'prioF1': 2, 'g4in': 1, 'n2': 40, 'x3at': 1, 'rdy': 1, 'early1': 20, 'chores': 0, 'e0L': 32, 'e0F': 40, 'u8': 127, 'light': 1, 'pubF': 1, 'pubL': 1, 'x3g': -1, 'pfg': 16, 'xprio': 0, 'xb': -1, 'prioL3': 0, 'prioV2': 0, 'stfl': 'sc1_nt', 'mix': 28, 'denseU': 6, 'dense3': 7, 'split': 1, 'dense': 3, 'fast0': 1, 'pfat': 1, 'pk': 1, 'w12': 12, 'b4F': 16, 'w2s': 3}
if __name__ == "__main__":
    g = Gen(opts=BASE); open('cdna_kernels/' + NAME + '.s', 'w').write(g.build())
    for ss in SETS: emit('d_' + ss, BASE, ss)
```
